```python
import torch

def _softmax(x, axis=-1):
    return torch.softmax(x, dim=axis)

def _gelu(x):
    return torch.nn.functional.gelu(x, approximate='tanh')

def _silu(x):
    return torch.nn.functional.silu(x)

def _sigmoid(x):
    return torch.sigmoid(x)

def _layernorm(x, axis=-1, eps=1e-05):
    m = x.mean(dim=axis, keepdim=True)
    v = x.var(dim=axis, keepdim=True, unbiased=False)
    return (x - m) / torch.sqrt(v + eps)

def _scatter_add(tgt, idx, src, axis=0):
    return tgt.clone().index_add_(axis, idx, src)

def _segment_sum(src, seg, n):
    out = torch.zeros((n,) + src.shape[1:], dtype=src.dtype)
    return out.index_add_(0, seg, src)

def _pad(x, pw):
    flat = tuple((v for pair in reversed(pw) for v in pair))
    return torch.nn.functional.pad(x, flat)
kernel_name = 'parallel_sum__softmax_full_mha__mixer_gmlp__prompt'

def setup_inputs():

    _w = lambda a: (lambda t: t.to(torch.bfloat16) if t.is_floating_point() else t)(torch.as_tensor(a))

    def _A_setup():
        B, S, D = (1, 2048, 640)
        return {'x': _w((lambda *s: torch.randn(*s, dtype=torch.bfloat16) * 0.05)(B, S, D)), 'wqkv': _w((lambda *s: torch.randn(*s, dtype=torch.bfloat16) * 0.2)(D, 3 * D)), 'wo': _w((lambda *s: torch.randn(*s, dtype=torch.bfloat16) * 0.1)(D, D))}
    _A_in = _A_setup()

    def _B_setup():
        B, S, D, F = (1, 2048, 640, 1536)
        Fh = F // 2
        return {'x': _w((lambda *s: torch.randn(*s, dtype=torch.bfloat16) * 0.05)(B, S, D)), 'w_in': _w((lambda *s: torch.randn(*s, dtype=torch.bfloat16) * 0.8)(D, 2 * Fh)), 'w_sp': _w(0.01 * (lambda *s: torch.randn(*s, dtype=torch.bfloat16) * 0.8)(S, S)), 'b_sp': _w(1.0 + 0.01 * (lambda *s: torch.randn(*s, dtype=torch.bfloat16) * 0.2)(S)), 'w_out': _w((lambda *s: torch.randn(*s, dtype=torch.bfloat16) * 0.2)(Fh, D))}
    _B_in = _B_setup()
    return {'A_x': _A_in['x'], 'A_wqkv': _A_in['wqkv'], 'A_wo': _A_in['wo'], 'B_x': _B_in['x'], 'B_w_in': _B_in['w_in'], 'B_w_sp': _B_in['w_sp'], 'B_b_sp': _B_in['b_sp'], 'B_w_out': _B_in['w_out']}

def reference(A_x, A_wqkv, A_wo, B_x, B_w_in, B_w_sp, B_b_sp, B_w_out):

    def _A_ref(x, wqkv, wo):
        B, S, D = x.shape
        H = 32
        Dh = D // H
        qkv = (lambda x, *d: x.permute(*d))((x @ wqkv).reshape(B, S, 3, H, Dh), 2, 0, 3, 1, 4)
        q, k, v = (qkv[0], qkv[1], qkv[2])
        scale = Dh ** (-0.5)
        scores = torch.einsum('bhqd,bhkd->bhqk', q, k) * scale
        p = _softmax(scores, axis=-1)
        o = torch.einsum('bhqk,bhkd->bhqd', p, v)
        return (lambda x, *d: x.permute(*d))(o, 0, 2, 1, 3).reshape(B, S, D) @ wo

    def _B_ref(x, w_in, w_sp, b_sp, w_out):
        B, S, D = x.shape
        F = w_in.shape[-1]
        Fh = F // 2
        z = _gelu(torch.einsum('bsd,df->bsf', x, w_in))
        z1 = z[..., :Fh].clone()
        z2 = _layernorm(z[..., Fh:], axis=-1)
        g = torch.einsum('ts,bsf->btf', w_sp, z2) + b_sp[None, :, None]
        return torch.einsum('bsf,fd->bsd', z1 * g, w_out)
    x = A_x
    xn = _layernorm(x, axis=-1)
    return x + _A_ref(xn, A_wqkv, A_wo) + _B_ref(xn, B_w_in, B_w_sp, B_b_sp, B_w_out)
```

```python
import re

REG_RE = re.compile(r'\b([vas])(\d+)\b|\b([vas])\[(\d+):(\d+)\]|\b(vcc|exec|m0|scc|vcc_lo|vcc_hi|exec_lo|exec_hi)\b')

def regs_of(tok):
    out = []
    for m in REG_RE.finditer(tok):
        if m.group(1):
            out.append((m.group(1), int(m.group(2))))
        elif m.group(3):
            for i in range(int(m.group(4)), int(m.group(5)) + 1):
                out.append((m.group(3), i))
        else:
            n = m.group(6)
            if n.startswith('vcc'): n = 'vcc'
            if n.startswith('exec'): n = 'exec'
            out.append((n, 0))
    return out

TRANS = ('v_exp_', 'v_log_', 'v_rcp_', 'v_rsq_', 'v_sqrt_', 'v_sin_', 'v_cos_')

def split_ops(s):
    ops, depth, cur = [], 0, ''
    for ch in s:
        if ch == '[': depth += 1
        if ch == ']': depth -= 1
        if ch == ',' and depth == 0:
            ops.append(cur.strip()); cur = ''
        else:
            cur += ch
    if cur.strip(): ops.append(cur.strip())
    return ops

class Ins:
    def __init__(self, text):
        self.text = text
        t = text.split(';')[0].strip()
        self.is_label = t.endswith(':')
        self.is_dir = t.startswith('.') and not self.is_label
        self.empty = (t == '')
        self.op = ''
        self.dst, self.src = [], []
        self.kind = 'none'
        if self.is_label or self.is_dir or self.empty:
            return
        parts = t.split(None, 1)
        self.op = op = parts[0]
        rest = parts[1] if len(parts) > 1 else ''
        ops = split_ops(rest)
        if ops:
            last = ops[-1].split(None)
            self.mods = ' '.join(last[1:])
            ops[-1] = last[0] if last else ''
        else:
            self.mods = ''
        self.ops = ops
        R = regs_of
        if op.startswith('v_mfma'):
            self.kind = 'mfma'
            self.dst = R(ops[0]); self.srcA = R(ops[1]); self.srcB = R(ops[2]); self.srcC = R(ops[3])
            self.src = self.srcA + self.srcB + self.srcC
            if '32x32x16' in op or '32x32x8' in op: self.passes = 8
            elif '16x16x32' in op or '16x16x16' in op: self.passes = 4
            else: raise ValueError('unknown mfma ' + op)
        elif op.startswith('v_'):
            self.kind = 'valu'
            if op.startswith('v_cmp'):
                self.dst = R(ops[0]); self.src = sum((R(o) for o in ops[1:]), [])
                if op.startswith('v_cmpx'): self.dst += [('exec', 0)]
            elif op.startswith('v_permlane') and 'swap' in op:
                self.dst = R(ops[0]) + R(ops[1]); self.src = R(ops[0]) + R(ops[1])
            elif op.startswith(('v_add_co', 'v_sub_co', 'v_addc_co', 'v_subb_co', 'v_mad_u64', 'v_div_scale')):
                self.dst = R(ops[0]) + R(ops[1]); self.src = sum((R(o) for o in ops[2:]), [])
            elif op == 'v_nop':
                pass
            else:
                self.dst = R(ops[0]); self.src = sum((R(o) for o in ops[1:]), [])
                if op.startswith(('v_fmac', 'v_dot2c', 'v_writelane', 'v_pk_fmac')) or 'UNUSED_PRESERVE' in self.mods or '_dpp' in op:
                    self.src += R(ops[0])
            self.trans = op.startswith(TRANS)
            self.dpp = '_dpp' in op or 'row_' in self.mods or 'quad_perm' in self.mods
            self.sdwa_or_opsel = ('_sdwa' in op and 'dst_sel:DWORD' not in self.mods and 'dst_sel' in self.mods)
        elif op.startswith('ds_'):
            self.kind = 'ds'
            if op.startswith(('ds_read', 'ds_bpermute', 'ds_permute', 'ds_swizzle')) or '_rtn' in op:
                self.dst = R(ops[0]); self.src = sum((R(o) for o in ops[1:]), [])
            else:
                self.src = sum((R(o) for o in ops), [])
        elif op.startswith(('buffer_', 'global_')):
            self.kind = 'vmem'
            self.lds = bool(re.search(r'\blds\b', self.mods)) or 'load_lds' in op
            if op.startswith(('buffer_inv', 'buffer_wbl2')):
                pass
            elif 'load' in op and not self.lds:
                self.dst = R(ops[0]); self.src = sum((R(o) for o in ops[1:]), [])
                if 'd16' in op: self.src += R(ops[0])
            elif self.lds:
                self.src = sum((R(o) for o in ops), []) + [('m0', 0)]
            else:
                self.src = sum((R(o) for o in ops), [])
                if 'atomic' in op and 'sc0' in self.mods: self.dst = R(ops[0])
                self.store_data = R(ops[0]) if op.startswith('buffer_') else R(ops[1])
                self.wide = ('x3' in op or 'x4' in op)
        elif op.startswith('s_'):
            self.kind = 'salu'
            if op.startswith(('s_cmp', 's_cbranch', 's_branch', 's_waitcnt', 's_barrier', 's_nop', 's_endpgm', 's_setprio', 's_sleep', 's_bitcmp')):
                self.src = sum((R(o) for o in ops), [])
            else:
                self.dst = R(ops[0]); self.src = sum((R(o) for o in ops[1:]), [])
                if 'saveexec' in op: self.dst += [('exec', 0)]
        else:
            raise ValueError('unknown instr: ' + text)

    def states(self):
        if self.kind == 'none': return 0
        if self.op == 's_nop': return int(self.ops[0], 0) + 1
        return 1

def need(p, c):
    n = 0
    ov = lambda a, b: bool(set(a) & set(b))
    vg = lambda l: [r for r in l if r[0] in 'va']
    sg = lambda l: [r for r in l if r[0] in ('s', 'vcc')]
    if p.kind == 'valu':
        if c.kind == 'mfma':
            if ov(vg(p.dst), c.src): n = max(n, 2)
            if ('exec', 0) in p.dst: n = max(n, 4)
        if c.kind == 'valu':
            if p.trans and not c.trans and ov(p.dst, c.src): n = max(n, 1)
            if c.op.startswith('v_permlane') and ov(vg(p.dst), c.src): n = max(n, 2)
            if c.op.startswith(('v_readlane', 'v_readfirstlane')) and ov(vg(p.dst), c.src): n = max(n, 1)
            if c.dpp and ov(vg(p.dst), c.src): n = max(n, 2)
            if ov(sg(p.dst), c.src):
                n = max(n, 4 if c.op.startswith(('v_readlane', 'v_writelane', 'v_div_fmas')) else 2)
            if p.sdwa_or_opsel and (ov(p.dst, c.src) or ov(p.dst, c.dst)): n = max(n, 1)
            if ('exec', 0) in p.dst: n = max(n, 5)
            if p.op.startswith('v_dot') and (ov(p.dst, c.src) or ov(p.dst, c.dst)):
                if not (c.op == p.op and p.dst == c.dst and not ov(p.dst, [r for o in c.ops[1:3] for r in regs_of(o)])):
                    n = max(n, 3)
        if c.kind == 'vmem' and ov(sg(p.dst), c.src): n = max(n, 5)
        if c.kind in ('vmem', 'ds') and p.op.startswith('v_dot') and ov(p.dst, c.src): n = max(n, 3)
        if c.kind == 'salu' and ov(sg(p.dst), c.src): n = max(n, 1)
    if p.kind == 'mfma':
        P = p.passes
        t_c = {4: 6, 8: 10}[P]; t_ab = {4: 8, 8: 12}[P]; t_war = {4: 3, 8: 7}[P]
        if c.kind == 'mfma':
            if ov(p.dst, c.srcA + c.srcB): n = max(n, t_ab)
            if ov(p.dst, c.srcC):
                if not (p.dst == c.srcC and p.passes == c.passes): n = max(n, t_c)
            elif ov(p.dst, c.dst): n = max(n, t_c)
        elif c.kind == 'valu':
            if ov(p.dst, c.src) or ov(p.dst, c.dst): n = max(n, t_ab)
            if ov(p.srcC, c.dst): n = max(n, t_war)
        elif c.kind in ('vmem', 'ds'):
            if ov(p.dst, c.src) or ov(p.dst, c.dst): n = max(n, t_ab)
            if ov(p.srcC, c.dst): n = max(n, t_war)
    if p.kind == 'salu':
        if ('m0', 0) in p.dst and c.kind == 'vmem' and getattr(c, 'lds', False): n = max(n, 1)
    if p.kind == 'vmem' and getattr(p, 'wide', False):
        if ov(p.store_data, c.dst): n = max(n, 2 if c.kind in ('valu', 'mfma') else 1)
    if p.kind == 'ds' and p.op in ('ds_write_b128', 'ds_write_b96') and c.kind in ('valu', 'mfma'):
        if ov(p.src, c.dst): n = max(n, 1)
    return n

MAXW = 13

def is_lit(t):
    t = t.strip()
    try:
        v = int(t, 0)
    except ValueError:
        return False
    return not (-16 <= v <= 64)

class Asm:
    def __init__(self):
        self.lines = []
    def __call__(self, s):
        for l in s.split('\n'):
            l = l.rstrip()
            m = re.match(r'\s*s_cselect_b32\s+(s\d+),\s*([^,]+),\s*([^\s;]+)', l)
            if m and is_lit(m.group(2)) and is_lit(m.group(3)):
                self.lines.append(f'    s_mov_b32 {m.group(1)}, {m.group(3)}')
                self.lines.append(f'    s_cselect_b32 {m.group(1)}, {m.group(2)}, {m.group(1)}')
                continue
            self.lines.append(l)
    def label(self, name):
        self.lines.append(name + ':')

    def fix(self, verbose=False):
        ins = [Ins(l) for l in self.lines]
        nins = 0
        changed = True
        while changed:
            changed = False
            out = []
            for c in ins:
                if c.kind != 'none':
                    dist = 0; req = 0
                    for p in reversed(out):
                        if p.kind == 'none': continue
                        if p.op in ('s_branch', 's_endpgm'): break
                        r = need(p, c) - dist
                        if r > req: req = r; why = p
                        dist += p.states()
                        if dist >= MAXW: break
                    if req > 0:
                        if verbose: print(f'  hazard: +{req} between [{why.text.strip()}] and [{c.text.strip()}]')
                        out.append(Ins(f'    s_nop {req-1}')); nins += 1
                out.append(c)
            ins = out
            labels = {i.text.split(';')[0].strip()[:-1]: k for k, i in enumerate(ins) if i.is_label}
            for k, b in enumerate(ins):
                if b.op.startswith(('s_cbranch', 's_branch')):
                    tgt = labels[b.ops[0]]
                    before = []
                    d = 0
                    for p in reversed(ins[:k+1]):
                        if p.kind == 'none': continue
                        if p is not b and p.op in ('s_branch', 's_endpgm'): break
                        before.append(p); d += p.states()
                        if d >= MAXW: break
                    dafter = 0; req = 0
                    for c in ins[tgt:]:
                        if c.kind == 'none': continue
                        dist = dafter
                        for p in before:
                            r = need(p, c) - dist
                            if r > req: req = r; why = (p, c)
                            dist += p.states()
                        dafter += c.states()
                        if dafter >= MAXW or c.op in ('s_branch', 's_endpgm'): break
                    if req > 0:
                        if verbose: print(f'  branch hazard: +{req} between [{why[0].text.strip()}] and [{why[1].text.strip()}]')
                        ins.insert(k, Ins(f'    s_nop {req-1}')); nins += 1
                        changed = True
                        break
        self.lines = [i.text for i in ins]
        return nins

    def text(self):
        return '\n'.join(self.lines) + '\n'
```

```python
import math, struct
def hx(x): return '0x%x' % (x & 0xffffffff)
S = 2048; D = 640; H = 32; DH = 20; FH = 768
WS_Q   = 0
WS_KV  = WS_Q + 32*64*1280
WS_Z1  = WS_KV + 32*64*2560
WS_Y2  = WS_Z1 + 2048*768*2
WS_Z2  = WS_Y2 + 2048*768*2
WS_OU  = WS_Z2 + 2048*768*2
WS_WT  = WS_OU + 128*44*1024
WS_RS  = WS_WT + 8*44*5*1024
WS_CS  = WS_RS + 2048*8
WS_FLAG = WS_CS + 32*8*512
WS_DIAG = WS_FLAG + 4096
WS_END = WS_DIAG + 4*256*16*16*8
import os
DIAG = os.environ.get('DIAG', '0') == '1'
def stamp(kern, slot, wave_s=33, ws_srd=16, vt=(30, 31, 1)):
    if not DIAG: return ''
    return f"""    s_memrealtime s[88:89]
    s_memtime s[92:93]
    s_lshl_b32 s90, s2, 4
    s_add_u32 s90, s90, s{wave_s}
    s_lshl_b32 s90, s90, 7
    s_add_u32 s90, s90, {hx(WS_DIAG + kern*256*16*128 + slot*8)}
    s_waitcnt lgkmcnt(0)
    v_mov_b32 v{vt[0]}, s88
    v_mov_b32 v{vt[1]}, s92
    v_mov_b32 v{vt[2]}, 0
    buffer_store_dwordx2 v[{vt[0]}:{vt[1]}], v{vt[2]}, s[{ws_srd}:{ws_srd+3}], s90 offen"""
QSCALE = (DH ** -0.5) * math.log2(math.e)
def f2u(x): return struct.unpack('<I', struct.pack('<f', x))[0]
GELU_K1 = 2*math.sqrt(2/math.pi)*math.log2(math.e)
GELU_K2 = GELU_K1*0.044715

def kd(name, vgpr, sgpr=96, accum=None):
    if accum is None: accum = (vgpr + 3)//4*4
    return f""".amdhsa_kernel {name}
  .amdhsa_next_free_vgpr {vgpr}
  .amdhsa_next_free_sgpr {sgpr}
  .amdhsa_accum_offset {accum}
  .amdhsa_group_segment_fixed_size 0
  .amdhsa_kernarg_size 88
  .amdhsa_user_sgpr_count 2
  .amdhsa_user_sgpr_kernarg_segment_ptr 1
  .amdhsa_system_sgpr_workgroup_id_x 1
.end_amdhsa_kernel
"""
def vr(a, n): return f"v[{a}:{a+n-1}]" if n > 1 else f"v{a}"
def srd(a, base, size):
    return f"""    s_mov_b32 s{a}, s{base}
    s_mov_b32 s{a+1}, s{base+1}
    s_mov_b32 s{a+2}, {hx(size)}
    s_mov_b32 s{a+3}, 0x00020000"""

def allreduce32(a, r, t):
    a(f"""    v_add_f32_dpp v{r}, v{r}, v{r} quad_perm:[1,0,3,2] row_mask:0xf bank_mask:0xf
    v_add_f32_dpp v{r}, v{r}, v{r} quad_perm:[2,3,0,1] row_mask:0xf bank_mask:0xf
    v_add_f32_dpp v{r}, v{r}, v{r} row_half_mirror row_mask:0xf bank_mask:0xf
    v_add_f32_dpp v{r}, v{r}, v{r} row_mirror row_mask:0xf bank_mask:0xf
    v_mov_b32 v{t}, v{r}
    v_permlane16_swap_b32 v{r}, v{t}
    v_add_f32 v{r}, v{r}, v{t}""")
```

```python
from asmlib import Asm
from gen_common import *

STG = 49152
ST_OFF = 3*STG
CP_OFF = ST_OFF + 2560
K1_LDS = CP_OFF + 8192
NST = 10

def interleave(mfmas, reads, valus):
    out = []
    n = len(mfmas)
    ri = 0; vi = 0
    for m in range(n):
        out.append(mfmas[m])
        tgt = (len(reads)*(m+1) + n - 1)//n
        while ri < tgt:
            out.append(reads[ri]); ri += 1
        tgt = (len(valus)*(m+1))//n
        while vi < tgt:
            out.append(valus[vi]); vi += 1
    return out

def gelu_pairs(a, regs, t0):
    G = 4
    for g0 in range(0, len(regs), G):
        grp = regs[g0:g0+G]
        for i, r in enumerate(grp):
            t = t0 + 2*i
            a(f"    v_pk_mul_f32 {vr(t,2)}, {vr(r,2)}, {vr(r,2)}")
        for i, r in enumerate(grp):
            t = t0 + 2*i
            a(f"    v_pk_fma_f32 {vr(t,2)}, {vr(t,2)}, v[4:5], v[6:7]")
        for i, r in enumerate(grp):
            t = t0 + 2*i
            a(f"    v_pk_mul_f32 {vr(t,2)}, {vr(t,2)}, {vr(r,2)}")
        for i, r in enumerate(grp):
            t = t0 + 2*i
            a(f"    v_exp_f32 v{t}, v{t}")
            a(f"    v_exp_f32 v{t+1}, v{t+1}")
        for i, r in enumerate(grp):
            t = t0 + 2*i
            a(f"    v_pk_add_f32 {vr(t,2)}, {vr(t,2)}, 1.0 op_sel_hi:[1,0]")
        for i, r in enumerate(grp):
            t = t0 + 2*i
            a(f"    v_rcp_f32 v{t}, v{t}")
            a(f"    v_rcp_f32 v{t+1}, v{t+1}")
        for i, r in enumerate(grp):
            t = t0 + 2*i
            a(f"    v_pk_mul_f32 {vr(r,2)}, {vr(r,2)}, {vr(t,2)}")

def gen_k1(a):
    a(f""".p2align 8
.type k1_kernel,@function
k1_kernel:
    s_cmp_ge_u32 s2, 256
    s_cbranch_scc1 K1_END
    s_load_dwordx4 s[4:7], s[0:1], 0        ; x, wqkv
    s_load_dwordx2 s[24:25], s[0:1], 16     ; wo
    s_load_dwordx2 s[26:27], s[0:1], 32     ; w_in
    s_load_dwordx2 s[28:29], s[0:1], 56     ; w_out
    s_load_dwordx4 s[68:71], s[0:1], 72
    v_lshrrev_b32 v1, 6, v0
    v_and_b32 v2, 63, v0                    ; lane
    v_readfirstlane_b32 s33, v1
    s_and_b32 s34, s2, 7                    ; xcd
    s_lshr_b32 s35, s2, 3                   ; j
    s_and_b32 s36, s34, 1
    s_lshl_b32 s36, s36, 2
    s_and_b32 s37, s35, 3
    s_add_u32 s36, s36, s37                 ; rb = 4a + (j&3)
    s_lshr_b32 s37, s35, 2                  ; jj
    s_lshr_b32 s38, s34, 1                  ; b
    s_lshl_b32 s38, s38, 2
    s_and_b32 s39, s37, 3
    s_add_u32 s38, s38, s39                 ; g = 4b + (jj&3)
    s_waitcnt lgkmcnt(0)
{srd(8, 4, 2048*1280)}
{srd(16, 70, WS_END)}
{srd(72, 68, 256)}
{stamp(0, 0)}
    s_cmp_lt_u32 s37, 4
    s_cselect_b32 s12, s6, s26
    s_cselect_b32 s13, s7, s27
    s_cselect_b32 s14, {hx(640*3840)}, {hx(640*3072)}
    s_mov_b32 s15, 0x00020000
    s_cmp_ge_u32 s33, 4
    s_cbranch_scc1 K1_PROD
    ; ---------------- consumers ----------------
    s_cmp_ge_u32 s37, 4
    s_cbranch_scc1 K1_CONS_Z
    s_cmp_eq_u32 s38, 15
    s_cbranch_scc1 K1_END
    s_cmp_ge_u32 s38, 10
    s_cbranch_scc1 K1_CONS_V
    s_branch K1_CONS_QK
K1_CONS_Z:
    s_cmp_ge_u32 s38, 8
    s_cbranch_scc1 K1_CONS_Z2
    s_branch K1_CONS_Z1
""")
    producer(a)
    consumer(a, 'QK')
    consumer(a, 'V')
    consumer(a, 'Z1')
    consumer(a, 'Z2')
    a("K1_END:\n    s_endpgm")

def rowstat_loads(a):
    a(f"""    s_lshr_b32 s76, s34, 1
    s_lshl_b32 s76, s76, 3
    s_add_u32 s77, s76, s37
    s_lshl_b32 s76, s77, 3
    s_lshl_b32 s78, s36, 8
    s_add_u32 s76, s76, s78
    s_lshl_b32 s78, s40, 1
    s_add_u32 s76, s76, s78                 ; row
    s_mul_i32 s78, s76, 1280
    v_lshrrev_b32 v58, 5, v2
    v_mul_u32_u24 v58, 1280, v58
    v_and_b32 v59, 31, v2
    v_lshl_add_u32 v60, v59, 4, v58
    v_lshl_add_u32 v61, v59, 3, v58
    buffer_load_dwordx4 v[48:51], v60, s[8:11], s78 offen
    buffer_load_dwordx4 v[52:55], v60, s[8:11], s78 offen offset:512
    buffer_load_dwordx2 v[56:57], v61, s[8:11], s78 offen offset:1024""")

def rowstat_compute(a):
    for i in range(10):
        a(f"    v_lshlrev_b32 v{100+2*i}, 16, v{48+i}")
        a(f"    v_and_b32 v{101+2*i}, 0xffff0000, v{48+i}")
    a("    v_add_f32 v58, v100, v101")
    a("    v_add_f32 v59, v102, v103")
    for i in range(4, 20, 2):
        a(f"    v_add_f32 v58, v58, v{100+i}")
        a(f"    v_add_f32 v59, v59, v{101+i}")
    a("    v_add_f32 v58, v58, v59")
    allreduce32(a, 58, 60)
    a(f"    v_mul_f32 v58, {hx(f2u(-1.0/640))}, v58      ; -mu")
    for i in range(20):
        a(f"    v_add_f32 v{100+i}, v58, v{100+i}")
    a("    v_mul_f32 v59, v100, v100")
    a("    v_mul_f32 v60, v101, v101")
    for i in range(2, 20, 2):
        a(f"    v_fmac_f32 v59, v{100+i}, v{100+i}")
        a(f"    v_fmac_f32 v60, v{101+i}, v{101+i}")
    a("    v_add_f32 v59, v59, v60")
    allreduce32(a, 59, 60)
    a(f"""    v_mov_b32 v60, {hx(f2u(1e-5))}
    v_fmac_f32 v60, {hx(f2u(1.0/640))}, v59
    v_rsq_f32 v59, v60
    v_lshrrev_b32 v61, 5, v2
    v_lshlrev_b32 v61, 3, v61
    s_lshl_b32 s78, s76, 3
    s_add_u32 s78, s78, {hx(WS_RS)}
    buffer_store_dwordx2 v[58:59], v61, s[16:19], s78 offen sc1""")

def send_flag(a):
    a("""    s_and_b32 s78, s2, 31
    s_lshl_b32 s78, s78, 3
    v_mov_b32 v58, 1
    v_mov_b32 v59, 0
    s_mov_b64 s[80:81], exec
    s_mov_b64 exec, 1
    buffer_atomic_add v58, v59, s[72:75], s78 offen sc1
    s_mov_b64 exec, s[80:81]""")

def producer(a):
    a(f"""K1_PROD:
    s_sub_u32 s40, s33, 4                   ; pw
    s_mov_b32 s82, 0
    v_mov_b32 v62, 0
    v_lshrrev_b32 v4, 3, v2                 ; l>>3
    v_mul_u32_u24 v3, 1280, v4
    v_lshrrev_b32 v5, 4, v2                 ; l>>4
    s_and_b32 s41, s40, 1
    s_lshl_b32 s41, s41, 2
    v_add_u32 v6, s41, v5
    v_and_b32 v7, 7, v2
    v_xor_b32 v6, v6, v7
    v_lshl_add_u32 v3, v6, 4, v3
    s_lshl_b32 s42, s36, 8
    s_lshl_b32 s43, s40, 3
    s_add_u32 s42, s42, s43
    s_mul_i32 s42, s42, 1280
    s_lshl_b32 s44, s40, 10
    s_cmp_ge_u32 s37, 4
    s_cbranch_scc1 K1_PROD_Z
    s_cmp_eq_u32 s38, 15
    s_cbranch_scc1 K1_PROD_WT_ONLY
""")
    for var in ('W128', 'W96'):
        if var == 'W96':
            a("K1_PROD_Z:")
        if var == 'W128':
            N = 12; RS = 3840
            a(f"""    v_mul_u32_u24 v8, 3840, v5              ; r*3840
    v_and_b32 v9, 15, v2
    v_lshlrev_b32 v10, 2, v5
    v_xor_b32 v9, v9, v10
    v_lshl_add_u32 v8, v9, 4, v8            ; W voffset
    s_mul_i32 s45, s40, {4*3840}
    s_lshl_b32 s46, s38, 8                  ; col0*2 = g*256
    s_add_u32 s45, s45, s46
    s_add_u32 s47, s44, 32768
""")
        else:
            N = 11; RS = 3072
            for e in range(3):
                a(f"""    v_add_u32 v11, {64*e}, v2
    v_mul_u32_u24 v12, 5462, v11
    v_lshrrev_b32 v12, 16, v12              ; row'
    v_mul_u32_u24 v13, 12, v12
    v_sub_u32 v13, v11, v13                 ; pos
    v_mul_u32_u24 v{8+e}, 3072, v12
    v_lshl_add_u32 v{8+e}, v13, 4, v{8+e}""")
            a(f"""    s_mul_i32 s45, s40, {16*3072}
    s_mul_i32 s46, s38, 192
    s_add_u32 s45, s45, s46
    s_mul_i32 s47, s40, 3072
    s_add_u32 s47, s47, 32768
""")
        def issue(slot_expr_s):
            a(f"    s_add_u32 s50, s44, s{slot_expr_s}")
            a(f"    s_add_u32 s51, s47, s{slot_expr_s}")
            for m in range(8):
                a(f"    s_add_u32 m0, s50, {m*4096}")
                a(f"    s_add_u32 s52, s42, {m*32*1280}")
                a(f"    buffer_load_dwordx4 v3, s[8:11], s52 offen lds")
                if var == 'W128' and m < 4:
                    a(f"    s_add_u32 m0, s51, {m*4096}")
                    a(f"    s_add_u32 s52, s45, {m*16*3840}")
                    a(f"    buffer_load_dwordx4 v8, s[12:15], s52 offen lds")
                if var == 'W96' and m < 3:
                    a(f"    s_add_u32 m0, s51, {m*1024}")
                    a(f"    buffer_load_dwordx4 v{8+m}, s[12:15], s45 offen lds")
            a(f"    s_add_u32 s42, s42, 128")
            a(f"    s_add_u32 s45, s45, {64*RS}")
        L = f"K1_PL_{var}"
        a(f"""    s_mov_b32 s48, 0
    s_mov_b32 s49, 0
{L}:""")
        issue(48)
        a(f"""    s_add_u32 s48, s48, {STG}
    s_cmp_eq_u32 s48, {3*STG}
    s_cselect_b32 s48, 0, s48
    s_add_u32 s49, s49, 1
    s_cmp_lt_u32 s49, 3
    s_cbranch_scc1 {L}
    s_cmp_gt_u32 s49, 4
    s_cbranch_scc1 {L}_B
    s_cmp_eq_u32 s49, 4
    s_cbranch_scc1 {L}_S""")
        rowstat_loads(a)
        a(f"""    s_mul_i32 s79, s36, 80
    s_mul_i32 s78, s40, 20
    s_add_u32 s79, s79, s78
    s_mul_i32 s79, s79, {RS}
    s_add_u32 s79, s79, s46
    v_mul_u32_u24 v62, {RS}, v5
    v_and_b32 v63, 15, v2
    v_lshl_add_u32 v62, v63, 4, v62""")
        for m in range(5):
            a(f"    buffer_load_dwordx4 {vr(64+4*m,4)}, v62, s[12:15], s79 offen")
            if m < 4: a(f"    s_add_u32 s79, s79, {4*RS}")
        a(f"""    s_waitcnt vmcnt({2*N+8})
    s_barrier                               ; bar 0
    s_waitcnt vmcnt({N+8})
    s_barrier                               ; bar 1
    s_branch {L}
{L}_S:
    s_waitcnt vmcnt({N})""")
        rowstat_compute(a)
        for e in range(4):
            a(f"    v_lshlrev_b32 v{100+2*e}, 16, v{64+e}")
            a(f"    v_and_b32 v{101+2*e}, 0xffff0000, v{64+e}")
        for m in range(1, 5):
            for e in range(4):
                a(f"    v_lshlrev_b32 v110, 16, v{64+4*m+e}")
                a(f"    v_and_b32 v111, 0xffff0000, v{64+4*m+e}")
                a(f"    v_add_f32 v{100+2*e}, v{100+2*e}, v110")
                a(f"    v_add_f32 v{101+2*e}, v{101+2*e}, v111")
        a(f"""    s_lshl_b32 s78, s40, 11
    s_add_u32 s78, s78, {CP_OFF}
    v_lshl_add_u32 v62, v2, 5, s78
    ds_write_b128 v62, v[100:103]
    ds_write_b128 v62, v[104:107] offset:16
    s_waitcnt lgkmcnt(0)
    s_barrier                               ; bar 2
    s_cmp_lg_u32 s40, 0
    s_cbranch_scc1 {L}
    v_lshlrev_b32 v62, 3, v2
    v_add_u32 v63, {CP_OFF}, v62""")
        for p in range(16):
            a(f"    ds_read_b64 {vr(64+2*p,2)}, v63 offset:{p*512}")
        for p in range(1, 16):
            if p == 1: a("    s_waitcnt lgkmcnt(8)")
            if p == 8: a("    s_waitcnt lgkmcnt(0)")
            a(f"    v_add_f32 v64, v64, v{64+2*p}")
            a(f"    v_add_f32 v65, v65, v{65+2*p}")
        a(f"""    s_lshl_b32 s78, s77, 3
    s_add_u32 s78, s78, s36
    s_lshl_b32 s78, s78, 9
    s_add_u32 s78, s78, {hx(WS_CS)}
    buffer_store_dwordx2 v[64:65], v62, s[16:19], s78 offen sc1
    s_branch {L}
{L}_B:
    s_cmp_eq_u32 s49, {NST}
    s_cbranch_scc1 {L}_T
    s_waitcnt vmcnt({N})
    s_barrier                               ; bar (s49-2)
    s_cmp_eq_u32 s49, {NST-1}
    s_cbranch_scc1 {L}_F
    s_cmp_lg_u32 s49, 5
    s_cbranch_scc1 {L}
    s_cmp_lg_u32 s40, 0
    s_cbranch_scc1 {L}""")
        send_flag(a)
        a(f"""    s_branch {L}
{L}_F:
    v_and_b32 v62, 31, v2
    v_lshlrev_b32 v62, 3, v62
    buffer_load_dword v63, v62, s[72:75], 0 offen sc1
    s_branch {L}
{L}_T:""")
        wt_loads(a, var)
        a(f"""    s_waitcnt vmcnt({N+16})
    s_barrier                               ; bar 8
    s_branch K1_PROD_TAIL""")
    a("K1_PROD_WT_ONLY:")
    rowstat_loads(a)
    wt_loads(a, 'only')
    a("    s_waitcnt vmcnt(16)")
    rowstat_compute(a)
    a("""    s_waitcnt vmcnt(0)
    s_barrier
    s_cmp_lg_u32 s40, 0
    s_cbranch_scc1 K1_WT_STORE""")
    send_flag(a)
    a(f"""    s_branch K1_WT_STORE
K1_POLL:
    s_add_u32 s82, s82, 1
    s_cmp_gt_u32 s82, 200000
    s_cbranch_scc1 K1_POLL_DONE
    s_sleep 2
    buffer_load_dword v63, v62, s[72:75], 0 offen sc1
    s_waitcnt vmcnt(0)
K1_PROD_TAIL:
    v_cmp_ne_u32 vcc, 8, v63
    s_cbranch_vccnz K1_POLL
K1_POLL_DONE:
    s_lshl_b32 s78, s36, 2
    s_add_u32 s78, s78, s40
    s_lshl_b32 s78, s78, 9
    s_add_u32 s78, s78, {hx(WS_RS)}
    v_lshlrev_b32 v62, 3, v2
    buffer_load_dwordx2 v[64:65], v62, s[16:19], s78 offen sc1
    s_lshl_b32 s78, s77, 12
    s_lshl_b32 s79, s40, 7
    s_add_u32 s78, s78, s79
    s_add_u32 s78, s78, {hx(WS_CS)}
    v_and_b32 v60, 31, v2
    v_lshlrev_b32 v60, 2, v60
    v_lshrrev_b32 v61, 5, v2
    v_lshl_add_u32 v61, v61, 11, v60
    buffer_load_dword v66, v61, s[16:19], s78 offen sc1
    buffer_load_dword v67, v61, s[16:19], s78 offen offset:512 sc1
    buffer_load_dword v68, v61, s[16:19], s78 offen offset:1024 sc1
    buffer_load_dword v69, v61, s[16:19], s78 offen offset:1536 sc1
    s_waitcnt vmcnt(5)
    s_barrier                               ; bar 9
    s_cmp_lt_u32 s38, 5
    s_cselect_b32 s79, {hx(f2u(QSCALE))}, 1.0
    s_cmp_lt_u32 s37, 4
    s_cselect_b32 s79, s79, 1.0
    s_lshl_b32 s78, s40, 8
    s_add_u32 s78, s78, {ST_OFF}
    v_lshl_add_u32 v62, v2, 2, s78
    s_lshl_b32 s78, s40, 7
    s_add_u32 s78, s78, {ST_OFF+2048}
    v_add_u32 v60, s78, v60
    s_waitcnt vmcnt(0)
    v_mul_f32 v65, s79, v65
    v_add_f32 v66, v66, v67
    v_add_f32 v68, v68, v69
    v_add_f32 v66, v66, v68
    v_mov_b32 v67, v66
    v_permlane32_swap_b32 v66, v67
    v_add_f32 v66, v66, v67
    ds_write_b32 v62, v64
    ds_write_b32 v62, v65 offset:1024
    ds_write_b32 v60, v66
    s_waitcnt lgkmcnt(0)
    s_barrier                               ; bar 10
K1_WT_STORE:
    v_lshlrev_b32 v3, 4, v2
    v_lshl_or_b32 v20, v33, 16, v32
    v_lshl_or_b32 v21, v35, 16, v34
    v_lshl_or_b32 v22, v37, 16, v36
    v_lshl_or_b32 v23, v39, 16, v38
    buffer_store_dwordx4 v[20:23], v3, s[16:19], s60 offen
    s_cmp_ge_u32 s62, 1760
    s_cbranch_scc1 K1_END
    v_lshl_or_b32 v24, v41, 16, v40
    v_lshl_or_b32 v25, v43, 16, v42
    v_lshl_or_b32 v26, v45, 16, v44
    v_lshl_or_b32 v27, v47, 16, v46
    buffer_store_dwordx4 v[24:27], v3, s[16:19], s61 offen
    s_endpgm
""")

def wt_loads(a, tag):
    a(f"""    s_lshl_b32 s54, s2, 2
    s_add_u32 s54, s54, s40                 ; F1
    s_add_u32 s62, s54, 1024                ; F2
    v_lshrrev_b32 v14, 5, v2                ; g>>1
    v_bfe_u32 v15, v2, 4, 1                 ; g&1
    v_and_b32 v16, 15, v2
    v_lshlrev_b32 v16, 1, v16               ; n*2""")
    for idx, (F, dst, so) in enumerate(((54, 20, 60), (62, 24, 61))):
        a(f"""    s_mul_i32 s55, s{F}, 1639
    s_lshr_b32 s55, s55, 16                 ; kk = F/40
    s_mul_i32 s56, s55, 40
    s_sub_u32 s56, s{F}, s56                ; ntile
    s_mul_i32 s57, s56, 205
    s_lshr_b32 s57, s57, 10                 ; ng
    s_mul_i32 s58, s57, 5
    s_sub_u32 s58, s56, s58                 ; nt%5
    s_mul_i32 s{so}, s57, 44
    s_add_u32 s{so}, s{so}, s55
    s_mul_i32 s{so}, s{so}, 5
    s_add_u32 s{so}, s{so}, s58
    s_lshl_b32 s{so}, s{so}, 10
    s_add_u32 s{so}, s{so}, {hx(WS_WT)}
    s_sub_u32 s63, s55, 20
    s_lshl_b32 s63, s63, 5                  ; base
    s_mov_b32 s64, 16                       ; A
    s_mov_b32 s65, 4                        ; B
    s_mov_b32 s66, {8*1280}                 ; J*1280""")
        if idx == 0:
            a(f"""    s_sub_u32 s67, s55, 16
    s_mul_i32 s67, s67, 160
    s_add_u32 s67, s67, 16
    s_cmp_lt_u32 s55, 20
    s_cselect_b32 s63, s67, s63
    s_cselect_b32 s64, 80, s64
    s_cselect_b32 s65, 40, s65
    s_cselect_b32 s66, {20*1280}, s66
    s_cselect_b32 s20, s24, s28
    s_cselect_b32 s21, s25, s29
    s_cselect_b32 s22, {hx(640*1280)}, {hx(768*1280)}
    s_mov_b32 s23, 0x00020000
    s_mul_i32 s67, s55, 40
    s_cmp_lt_u32 s55, 16
    s_cselect_b32 s63, s67, s63
    s_cselect_b32 s64, 20, s64
    s_cselect_b32 s65, 4, s65
    s_cselect_b32 s66, {8*1280}, s66""")
        else:
            a(srd(20, 28, 768*1280))
        a(f"""    v_mul_u32_u24 v17, s64, v14
    v_mul_u32_u24 v18, s65, v15
    v_add3_u32 v17, v17, v18, s63
    v_mul_u32_u24 v17, 1280, v17
    s_lshl_b32 s67, s56, 5
    v_add3_u32 v17, v17, v16, s67""")
        for j in range(8):
            so2 = "0" if j < 4 else "s66"
            a(f"    buffer_load_ushort v{32 + idx*8 + j}, v17, s[20:23], {so2} offen offset:{(j&3)*1280}")

def consumer(a, typ):
    wide = typ in ('QK', 'V')
    ct = typ in ('QK', 'Z1')
    nS = 4 if wide else 2
    nN = 2 if wide else 3
    ACC = 128
    XF = 32; WF = 64
    XA = 8
    WA = 16
    SUM, SQ, CS, ONES = 20, 22, 24, 25
    SV = 96
    acc = lambda i, n: ACC + (i*nN + n)*16
    a(f"K1_CONS_{typ}:")
    a(f"""    v_and_b32 v3, 31, v2                    ; l&31
    v_lshrrev_b32 v4, 5, v2                 ; h
    v_bfe_u32 v5, v2, 1, 3                  ; (t>>1)&7
    v_xor_b32 v5, v5, v4
    v_lshlrev_b32 v5, 4, v5
    v_lshl_add_u32 v5, v3, 7, v5            ; t*128 + ((h^sw)*16)""")
    if wide:
        a(f"""    s_and_b32 s40, s33, 1                   ; mh
    s_lshr_b32 s41, s33, 1                  ; nh
    s_lshl_b32 s42, s40, 14
    s_lshl_b32 s43, s41, 13                 ; 2nh*4096
    s_add_u32 s44, s42, s43
    s_sub_u32 s45, s42, s43
    s_add_u32 s45, s45, 8192""")
        for js in range(4):
            a(f"    v_xor_b32 v6, {js*32}, v5")
            a(f"    v_add_u32 v{XA+js}, s44, v6")
            a(f"    v_add_u32 v{XA+4+js}, s45, v6")
        nXA = 8
        a(f"""    v_bfe_u32 v6, v2, 2, 2                  ; r
    v_and_b32 v7, 3, v2                     ; c
    v_bfe_u32 v26, v2, 4, 1                 ; nb
    s_lshl_b32 s46, s41, 1
    s_add_u32 s46, s46, s40
    v_xor_b32 v27, s46, v6                  ; B^r
    v_lshlrev_b32 v27, 6, v27
    v_lshl_add_u32 v27, v26, 5, v27
    v_lshl_add_u32 v27, v7, 3, v27
    v_lshl_add_u32 v28, v4, 3, v6           ; 8h + r
    v_lshl_add_u32 v27, v28, 8, v27
    v_add_u32 v{WA}, 32768, v27
    v_xor_b32 v{WA+1}, 64, v{WA}""")
        nWA = 2
        wrow = 256
    else:
        a(f"    s_lshl_b32 s44, s33, 13")
        for js in range(4):
            a(f"    v_xor_b32 v6, {js*32}, v5")
            a(f"    v_add_u32 v{XA+js}, s44, v6")
        nXA = 4
        a(f"""    v_bfe_u32 v6, v2, 2, 2                  ; r
    v_and_b32 v7, 3, v2                     ; c
    v_bfe_u32 v26, v2, 4, 1                 ; nb
    v_lshl_add_u32 v28, v4, 3, v6           ; 8h + r
    v_mul_u32_u24 v27, 192, v28
    v_lshl_add_u32 v27, v26, 5, v27
    v_lshl_add_u32 v27, v7, 3, v27
    v_add_u32 v27, 32768, v27
    s_cmp_eq_u32 s33, 3
    s_cselect_b32 s46, 0, s33               ; nt(0) = cw%3
    s_add_u32 s47, s46, 1
    s_cmp_eq_u32 s47, 3
    s_cselect_b32 s47, 0, s47               ; nt(1)
    s_add_u32 s48, s47, 1
    s_cmp_eq_u32 s48, 3
    s_cselect_b32 s48, 0, s48               ; nt(2)""")
        for n in range(3):
            a(f"    s_lshl_b32 s49, s{46+n}, 6")
            a(f"    v_add_u32 v{WA+n}, s49, v27")
        nWA = 3
        wrow = 192
    for r in range(ACC, ACC + nS*nN*16):
        a(f"    v_mov_b32 v{r}, 0")
    if typ == 'QK':
        a(f"""    s_cmp_ge_u32 s38, 5
    s_cselect_b32 s50, 5, 0
    s_sub_u32 s50, s38, s50                 ; g%5
    s_cmp_ge_u32 s38, 5
    s_cselect_b32 s51, {64*2560}, {64*1280}
    s_cselect_b32 s52, 2560, 1280
    s_cselect_b32 s53, {hx(WS_KV)}, {hx(WS_Q)}
    s_cselect_b32 s54, 1.0, {hx(f2u(QSCALE))}
    s_lshl_b32 s50, s50, 5""")
        for n in range(2):
            a(f"    s_xor_b32 s55, s46, {n}")
            a(f"    s_lshl_b32 s55, s55, 3")
            a(f"    s_add_u32 s55, s55, s50")
            for rg in range(4):
                d = SV + n*4 + rg
                a(f"""    v_add3_u32 v26, v4, s55, {2*rg}           ; Qn
    v_mul_u32_u24 v27, 205, v26
    v_lshrrev_b32 v27, 10, v27              ; head
    v_mul_u32_u24 v28, 5, v27
    v_sub_u32 v28, v26, v28                 ; q
    v_mul_lo_u32 v{d}, v27, s51
    v_lshrrev_b32 v29, 1, v28
    v_lshl_add_u32 v{d}, v29, 9, v{d}
    v_and_b32 v29, 1, v28
    v_lshl_add_u32 v{d}, v29, 3, v{d}
    v_lshrrev_b32 v29, 2, v28
    v_sub_u32 v29, 4, v29
    v_lshlrev_b32 v29, v29, v3
    v_add_u32 v{d}, v{d}, v29""")
    elif typ == 'V':
        a(f"""    s_sub_u32 s50, s38, 10
    s_lshl_b32 s50, s50, 7
    s_mov_b32 s51, {64*2560}
    s_mov_b32 s52, 2560
    s_mov_b32 s53, {hx(WS_KV + 1280)}
    s_mov_b32 s54, 1.0""")
        for n in range(2):
            d = SV + n
            a(f"""    s_xor_b32 s55, s46, {n}
    s_lshl_b32 s55, s55, 5
    s_add_u32 s55, s55, s50
    v_add_u32 v26, s55, v3                  ; n
    v_mul_u32_u24 v27, 3277, v26
    v_lshrrev_b32 v27, 16, v27              ; head
    v_mul_u32_u24 v28, 20, v27
    v_sub_u32 v28, v26, v28                 ; d
    v_mul_lo_u32 v{d}, v27, s51
    v_mad_u32_u24 v28, v4, 20, v28
    v_lshl_add_u32 v{d}, v28, 4, v{d}""")
    else:
        a(f"""    s_mov_b32 s54, 1.0
    v_lshlrev_b32 v{SV}, 4, v2""")

    def reads(js, buf):
        out = []
        xs = []
        for i in range(nS):
            areg = XA + js + (4 if (wide and i >= 2) else 0)
            xs.append(f"    ds_read_b128 {vr(XF+buf*16+4*i,4)}, v{areg} offset:{(i&1)*4096}")
        ws = []
        for n in range(nN):
            for sub in range(2):
                ws.append(f"    ds_read_b64_tr_b16 {vr(WF+buf*12+4*n+2*sub,2)}, v{WA+n} offset:{(16*js+4*sub)*wrow}")
        out = [xs[0]] + ws[:2] + xs[1:] + ws[2:]
        return out
    def mfmas(buf):
        out = []
        for n in range(nN):
            for i in range(nS):
                x = vr(XF+buf*16+4*i, 4); w = vr(WF+buf*12+4*n, 4); c = vr(acc(i, n), 16)
                if ct: out.append(f"    v_mfma_f32_32x32x16_bf16 {c}, {w}, {x}, {c}")
                else:  out.append(f"    v_mfma_f32_32x32x16_bf16 {c}, {x}, {w}, {c}")
        return out
    def stats(buf):
        out = []
        for e in range(4):
            for i in range(2):
                x = XF+buf*16+4*i+e
                out.append(f"    v_dot2c_f32_bf16 v{SUM+i}, v{x}, v{ONES}")
                out.append(f"    v_dot2c_f32_bf16 v{SQ+i}, v{x}, v{x}")
            out.append(f"    v_dot2c_f32_bf16 v{CS}, v{WF+buf*12+e}, v{ONES}")
        return out
    L = f"K1_CL_{typ}"
    a(f"""    s_mov_b32 s60, 0
    s_mov_b32 s61, {NST}
{stamp(0, 1)}
    s_barrier
{stamp(0, 2)}""")
    for r in reads(0, 0): a(r)
    a(f".p2align 4\n{L}:")
    for js in range(4):
        buf = js & 1
        a("    s_waitcnt lgkmcnt(0)")
        vals = []
        if js == 3:
            a("    s_barrier")
            rd = reads(0, 0)
        else:
            rd = reads(js+1, buf ^ 1)
        seq = interleave(mfmas(buf), rd, vals)
        if js == 2:
            seq.append(f"    s_add_u32 s60, s60, 1")
            seq.append(f"    s_cmp_eq_u32 s60, 3")
            seq.append(f"    s_cselect_b32 s62, {hx(-2*STG)}, {STG}")
            seq.append(f"    s_cselect_b32 s60, 0, s60")
            for r in list(range(XA, XA+nXA)) + list(range(WA, WA+nWA)):
                seq.append(f"    v_add_u32 v{r}, s62, v{r}")
        for s in seq: a(s)
    a(f"""    s_sub_u32 s61, s61, 1
    s_cmp_lg_u32 s61, 0
    s_cbranch_scc1 {L}
    s_waitcnt lgkmcnt(0)
{stamp(0, 3)}""")
    if wide:
        for i in range(4):
            a(f"""    s_lshl_b32 s55, s41, 1
    s_xor_b32 s55, s55, {i}
    s_lshl_b32 s56, s40, 2
    s_add_u32 s{64+i}, s55, s56""")
        for n in range(2):
            a(f"    s_xor_b32 s{70+n}, s46, {n}")
    else:
        for i in range(2):
            a(f"    s_lshl_b32 s55, s33, 1")
            a(f"    s_add_u32 s{64+i}, s55, {i}")
        for n in range(3):
            a(f"    s_mov_b32 s{70+n}, s{46+n}")
    if not wide:
        a(f"""    v_mov_b32 v4, {hx(f2u(-GELU_K2))}
    v_mov_b32 v5, {hx(f2u(-GELU_K2))}
    v_mov_b32 v6, {hx(f2u(-GELU_K1))}
    v_mov_b32 v7, {hx(f2u(-GELU_K1))}""")
    a("    v_lshrrev_b32 v29, 5, v2\n    v_lshlrev_b32 v29, 4, v29               ; h*16 bytes")
    LANE = 8
    PER = 32
    TMP = 80
    if ct:
        for i in range(nS):
            a(f"""    s_lshl_b32 s55, s{64+i}, 7
    s_add_u32 s55, s55, {ST_OFF}
    v_lshl_add_u32 v26, v3, 2, s55
    ds_read_b32 v{LANE+2*i}, v26
    ds_read_b32 v{LANE+2*i+1}, v26 offset:1024""")
        for n in range(nN):
            a(f"""    s_lshl_b32 s55, s{70+n}, 7
    s_add_u32 s55, s55, {ST_OFF+2048}
    v_add_u32 v27, s55, v29""")
            for rg in range(4):
                a(f"    ds_read_b128 {vr(PER+16*n+4*rg,4)}, v27 offset:{rg*32}")
        a("    s_waitcnt lgkmcnt(0)")
        for i in range(nS):
            if typ == 'QK':
                a(f"""    s_lshl_b32 s55, s36, 3
    s_add_u32 s55, s55, s{64+i}
    s_mul_i32 s55, s55, s52
    s_add_u32 s56, s55, s53""")
            for n in range(nN):
                c = acc(i, n)
                for p in range(8):
                    a(f"    v_pk_fma_f32 {vr(c+2*p,2)}, {vr(PER+16*n+2*p,2)}, {vr(LANE+2*i,2)}, {vr(c+2*p,2)} op_sel_hi:[1,0,1]")
                for p in range(8):
                    a(f"    v_pk_mul_f32 {vr(c+2*p,2)}, {vr(c+2*p,2)}, {vr(LANE+2*i,2)} op_sel:[0,1]")
                if typ == 'Z1':
                    gelu_pairs(a, [c+2*p for p in range(8)], TMP)
                for p in range(8):
                    a(f"    v_cvt_pk_bf16_f32 v{c+p}, v{c+2*p}, v{c+2*p+1}")
                if typ == 'QK':
                    for rg in range(4):
                        a(f"    buffer_store_dwordx2 {vr(c+2*rg,2)}, v{SV+4*n+rg}, s[16:19], s56 offen")
                else:
                    a(f"""    s_lshl_b32 s55, s36, 3
    s_add_u32 s55, s55, s{64+i}
    s_mul_i32 s55, s55, 24
    s_mul_i32 s56, s38, 3
    s_add_u32 s55, s55, s56
    s_add_u32 s55, s55, s{70+n}
    s_lshl_b32 s55, s55, 11
    s_add_u32 s56, s55, {hx(WS_Z1)}
    buffer_store_dwordx4 {vr(c,4)}, v{SV}, s[16:19], s56 offen
    buffer_store_dwordx4 {vr(c+4,4)}, v{SV}, s[16:19], s56 offen offset:1024""")
    else:
        for n in range(nN):
            a(f"""    s_lshl_b32 s55, s{70+n}, 7
    s_add_u32 s55, s55, {ST_OFF+2048}
    v_lshl_add_u32 v26, v3, 2, s55
    ds_read_b32 v{LANE+2*n}, v26""")
        for i in range(nS):
            a(f"""    s_lshl_b32 s55, s{64+i}, 7
    s_add_u32 s55, s55, {ST_OFF}
    v_add_u32 v27, s55, v29""")
            for rg in range(4):
                a(f"    ds_read_b128 {vr(PER+4*rg,4)}, v27 offset:{rg*32}")
                a(f"    ds_read_b128 {vr(PER+16+4*rg,4)}, v27 offset:{1024+rg*32}")
            a("    s_waitcnt lgkmcnt(0)")
            if typ == 'V':
                a(f"""    s_lshl_b32 s55, s36, 3
    s_add_u32 s55, s55, s{64+i}
    s_mul_i32 s55, s55, s52
    s_add_u32 s56, s55, s53""")
            for n in range(nN):
                c = acc(i, n)
                for p in range(8):
                    a(f"    v_pk_fma_f32 {vr(c+2*p,2)}, {vr(PER+2*p,2)}, {vr(LANE+2*n,2)}, {vr(c+2*p,2)} op_sel_hi:[1,0,1]")
                for p in range(8):
                    a(f"    v_pk_mul_f32 {vr(c+2*p,2)}, {vr(c+2*p,2)}, {vr(PER+16+2*p,2)}")
                if typ == 'Z2':
                    gelu_pairs(a, [c+2*p for p in range(8)], TMP)
                for p in range(8):
                    a(f"    v_cvt_pk_bf16_f32 v{c+p}, v{c+2*p}, v{c+2*p+1}")
                if typ == 'V':
                    a(f"    buffer_store_dwordx4 {vr(c,4)}, v{SV+n}, s[16:19], s56 offen")
                    a(f"    buffer_store_dwordx4 {vr(c+4,4)}, v{SV+n}, s[16:19], s56 offen offset:640")
                else:
                    for q in (0, 4):
                        a(f"    v_permlane32_swap_b32 v{c+q}, v{c+q+2}")
                        a(f"    v_permlane32_swap_b32 v{c+q+1}, v{c+q+3}")
                    a(f"""    s_lshl_b32 s55, s36, 3
    s_add_u32 s55, s55, s{64+i}
    s_lshl_b32 s55, s55, 1
    s_sub_u32 s56, s38, 8
    s_lshl_b32 s56, s56, 7
    s_add_u32 s55, s55, s56
    s_mul_i32 s55, s55, 3
    s_add_u32 s55, s55, s{70+n}
    s_lshl_b32 s55, s55, 10
    s_add_u32 s56, s55, {hx(WS_Y2)}
    buffer_store_dwordx4 {vr(c,4)}, v{SV}, s[16:19], s56 offen
    buffer_store_dwordx4 {vr(c+4,4)}, v{SV}, s[16:19], s56 offen offset:3072""")
    a(stamp(0, 4))
    if DIAG: a("    s_waitcnt vmcnt(0)")
    a(stamp(0, 5))
    a("    s_endpgm")
```

```python
from asmlib import Asm
from gen_common import *

PAIR = 5376
SLOT = 4*PAIR
WSP_OFF = 0
KVO = 4*24576
K2_LDS = KVO + 3*SLOT
FORCE_SLOW = os.environ.get('FORCE_SLOW', '0') == '1'
MARGIN = 30
TRIG = 30

def ln2_body(a, lds_off):
    a(f"""    v_lshrrev_b32 v4, 5, v0                 ; G = f-tile 0..23
    v_mul_u32_u24 v5, 43, v4
    v_lshrrev_b32 v5, 7, v5                 ; fg = G/3
    v_mul_u32_u24 v6, 3, v5
    v_sub_u32 v6, v4, v6                    ; ft
    v_mul_u32_u24 v5, {128*3}, v5
    v_add_u32 v5, v5, v6
    v_lshlrev_b32 v5, 10, v5
    v_and_b32 v6, 31, v0
    v_lshl_add_u32 v5, v6, 4, v5            ; voffset
    s_lshr_b32 s40, s2, 1
    s_mul_i32 s40, s40, 3072
    s_and_b32 s41, s2, 1
    s_lshl_b32 s41, s41, 9
    s_add_u32 s40, s40, s41
    s_add_u32 s41, s40, {hx(WS_Y2)}
    s_add_u32 s42, s40, {hx(WS_Z2)}
    buffer_load_dwordx4 v[8:11], v5, s[16:19], s41 offen
    s_waitcnt vmcnt(0)""")
    for e in range(4):
        a(f"    v_lshlrev_b32 v{16+2*e}, 16, v{8+e}")
        a(f"    v_and_b32 v{17+2*e}, 0xffff0000, v{8+e}")
    for e in range(8):
        a(f"    v_mov_b32 v{24+e}, v{16+e}")
        a(f"    v_mul_f32 v{32+e}, v{16+e}, v{16+e}")
    for e in range(8):
        a(f"    v_permlane32_swap_b32 v{24+e}, v{32+e}")
    for e in range(8):
        a(f"    v_add_f32 v{24+e}, v{24+e}, v{32+e}")
    for e in range(4):
        a(f"    v_permlane16_swap_b32 v{24+e}, v{28+e}")
    for e in range(4):
        a(f"    v_add_f32 v{24+e}, v{24+e}, v{28+e}")
    for pat in ("quad_perm:[1,0,3,2]", "quad_perm:[2,3,0,1]", "row_half_mirror", "row_mirror"):
        for e in range(4):
            a(f"    v_add_f32_dpp v{24+e}, v{24+e}, v{24+e} {pat} row_mask:0xf bank_mask:0xf")
    a(f"""    v_lshrrev_b32 v6, 4, v2
    v_lshlrev_b32 v6, 4, v6
    s_lshl_b32 s43, s33, 6
    s_add_u32 s43, s43, {lds_off}
    v_add_u32 v6, s43, v6
    ds_write_b128 v6, v[24:27]
    s_waitcnt lgkmcnt(0)
    s_barrier
    v_lshlrev_b32 v6, 2, v2
    v_add_u32 v6, {lds_off}, v6
    ds_read_b32 v24, v6
    ds_read_b32 v25, v6 offset:256
    ds_read_b32 v26, v6 offset:512
    s_waitcnt lgkmcnt(0)
    v_add_f32 v24, v24, v25
    v_add_f32 v24, v24, v26
    v_mov_b32 v25, v24
    v_permlane32_swap_b32 v24, v25
    v_add_f32 v24, v24, v25
    v_mov_b32 v25, v24
    v_permlane16_swap_b32 v24, v25
    v_add_f32 v24, v24, v25
    v_mov_b32_dpp v25, v24 row_ror:8 row_mask:0xf bank_mask:0xf
    v_mul_f32 v24, {hx(f2u(-1.0/768))}, v24
    v_mul_f32 v25, {hx(f2u(1.0/768))}, v25
    v_fma_f32 v25, -v24, v24, v25
    v_max_f32 v25, 0, v25
    v_add_f32 v25, {hx(f2u(1e-5))}, v25
    v_rsq_f32 v25, v25
    s_nop 0""")
    for e in range(8):
        a(f"    v_readlane_b32 s{44+e}, v24, {e}")
        a(f"    v_readlane_b32 s{52+e}, v25, {e}")
    for e in range(8):
        a(f"    v_add_f32 v{16+e}, s{44+e}, v{16+e}")
    for e in range(8):
        a(f"    v_mul_f32 v{16+e}, s{52+e}, v{16+e}")
    for e in range(4):
        a(f"    v_cvt_pk_bf16_f32 v{8+e}, v{16+2*e}, v{17+2*e}")

def gen_ln2(a):
    a(f""".p2align 8
.type ln2_kernel,@function
ln2_kernel:
    s_cmp_ge_u32 s2, 256
    s_cbranch_scc1 LN2_END
    s_load_dwordx2 s[24:25], s[0:1], 80
    v_lshrrev_b32 v1, 6, v0
    v_and_b32 v2, 63, v0
    v_readfirstlane_b32 s33, v1
    s_waitcnt lgkmcnt(0)
{srd(16, 24, WS_END)}
{stamp(1, 0, vt=(40,41,1))}""")
    ln2_body(a, 0)
    a("    buffer_store_dwordx4 v[8:11], v5, s[16:19], s42 offen")
    if DIAG: a("    s_waitcnt vmcnt(0)")
    a(stamp(1, 1, vt=(40,41,1)))
    a("LN2_END:\n    s_endpgm")

SA, SB = 16, 32
O = 48
P = 64
Q1, Q2 = 72, 76
K1F, K2F = 80, 84
V0F, V1F = 88, 92
AK1 = 96; AK2 = 97; AV0 = 99; AV1 = 101
MREG = 104
EREG = 105
T0 = 106

def pack_m(a, m, eff=True):
    a(f"""    v_sub_f32 v{T0}, 0, v{m}
    v_and_b32 v{T0+1}, 0xffff0000, v{T0}    ; hi
    v_sub_f32 v{T0}, v{T0}, v{T0+1}         ; lo
    v_cvt_pk_bf16_f32 v{T0+2}, v{T0+1}, v{T0}
    v_and_b32 v{T0}, 0xffff0000, v{T0+2}
    v_add_f32 v{T0}, v{T0}, v{T0+1}
    v_sub_f32 v{m}, 0, v{T0}
    v_cndmask_b32 v{Q2}, v{Q2}, v{T0+2}, s[60:61]""")

def max16(a, dst, s, first):
    if first:
        a(f"    v_max3_f32 v{dst}, v{s}, v{s+1}, v{s+2}")
        a(f"    v_max_f32 v{dst}, v{dst}, v{s+15}")
        rng = range(3, 15, 2)
    else:
        rng = range(0, 16, 2)
    for i in rng:
        a(f"    v_max3_f32 v{dst}, v{dst}, v{s+i}, v{s+i+1}")

def attention(a):
    off = lambda t: (t >> 1)*PAIR + (t & 1)*2560
    rdK1 = lambda t: f"    ds_read_b128 {vr(K1F,4)}, v{AK1} offset:{off(t)}"
    rdK2 = lambda t: f"    ds_read_b64 {vr(K2F,2)}, v{AK2+(t&1)} offset:{off(t)+1024}"
    rdV0 = lambda t: f"    ds_read_b128 {vr(V0F,4)}, v{AV0+(t&1)} offset:{off(t)+1280}"
    rdV1 = lambda t: f"    ds_read_b128 {vr(V1F,4)}, v{AV1+(t&1)} offset:{off(t)+1920}"
    qk1 = lambda s: f"    v_mfma_f32_32x32x16_bf16 {vr(s,16)}, {vr(K1F,4)}, {vr(Q1,4)}, 0"
    qk2 = lambda s: f"    v_mfma_f32_32x32x8_bf16 {vr(s,16)}, {vr(K2F,2)}, {vr(Q2,2)}, {vr(s,16)}"
    pv1 = f"    v_mfma_f32_32x32x16_bf16 {vr(O,16)}, {vr(V0F,4)}, {vr(P,4)}, {vr(O,16)}"
    pv2 = f"    v_mfma_f32_32x32x16_bf16 {vr(O,16)}, {vr(V1F,4)}, {vr(P+4,4)}, {vr(O,16)}"
    a(f"""K2_ATT:
    s_lshl_b32 s40, s37, 3
    s_add_u32 s40, s40, s33                 ; qt
    s_lshl_b32 s41, s36, 6
    s_add_u32 s41, s41, s40
    s_mul_i32 s41, s41, 1280                ; + WS_Q(=0)
    v_lshlrev_b32 v{AK1}, 4, v2
    v_and_b32 v3, 31, v2                    ; l&31
    v_lshrrev_b32 v4, 5, v2                 ; h
    v_lshlrev_b32 v5, 3, v3
    buffer_load_dwordx4 {vr(Q1,4)}, v{AK1}, s[16:19], s41 offen
    buffer_load_dwordx2 {vr(Q2,2)}, v5, s[16:19], s41 offen offset:1024
    s_mov_b32 s60, 0
    s_mov_b32 s61, -1
    v_mov_b32 v6, {5120+96-1024}
    v_cndmask_b32 v{AK2}, v5, v6, s[60:61]
    v_mov_b32 v6, {5120+96-1024-2560}
    v_cndmask_b32 v{AK2+1}, v5, v6, s[60:61]
    ; V address: d<20: (h*20+d)*16
    v_mad_u32_u24 v7, v4, 20, v3
    v_lshlrev_b32 v7, 4, v7
    v_cmp_gt_u32 s[62:63], 20, v3           ; d<20
    v_cmp_eq_u32 s[64:65], 20, v3           ; d==20
    v_cmp_lt_u32 s[66:67], 27, v3           ; d>=28""")
    for (reg, part, ones, z1, z2h0, z2h1) in ((AV0, 1280, 8, 9, 12, 1), (AV1, 1920, 0, 1, 4, 9)):
        a(f"""    v_mov_b32 v8, {z2h0*16}
    v_mov_b32 v9, {z2h1*16}
    v_cndmask_b32 v8, v8, v9, s[60:61]
    v_mov_b32 v9, {z1*16}
    v_cndmask_b32 v8, v9, v8, s[66:67]
    v_mov_b32 v9, {ones*16}
    v_cndmask_b32 v8, v8, v9, s[64:65]
    v_add_u32 v9, {5120-part}, v8
    v_cndmask_b32 v{reg}, v9, v7, s[62:63]
    v_add_u32 v9, {5120-part-2560}, v8
    v_cndmask_b32 v{reg+1}, v9, v7, s[62:63]""")
    a(f"""    s_cmp_ge_u32 s33, 3
    s_cbranch_scc1 K2_ATT_NOPAD
    v_and_b32 v8, 15, v2
    v_lshrrev_b32 v9, 4, v2
    v_mul_u32_u24 v9, {PAIR}, v9
    v_lshl_add_u32 v9, v8, 4, v9
    s_mul_i32 s42, s33, {SLOT}
    s_add_u32 s42, s42, {5120+KVO}
    v_add_u32 v9, s42, v9
    v_and_b32 v10, 7, v2
    v_cmp_eq_u32 vcc, 0, v10
    v_mov_b32 v11, 0x3f803f80
    v_cndmask_b32 v13, 0, v11, vcc
    v_mov_b32 v14, v13
    v_mov_b32 v15, v13
    v_cmp_eq_u32 vcc, 6, v8
    v_cndmask_b32 v12, v13, v11, vcc
    ds_write_b128 v9, v[12:15]
K2_ATT_NOPAD:""")
    for r in range(AK1, AV1+2): a(f"    v_add_u32 v{r}, {KVO}, v{r}")
    for r in range(16): a(f"    v_mov_b32 v{O+r}, 0")
    for r in range(4): a(f"    v_mov_b32 v{P+4+r}, 0")
    for r in range(4): a(f"    v_mov_b32 v{V1F+r}, 0")
    a(f"""    s_waitcnt vmcnt(0) lgkmcnt(0)
    v_cndmask_b32 v{Q2}, v{Q2}, 0, s[60:61]
    v_cndmask_b32 v{Q2+1}, v{Q2+1}, 0, s[60:61]
{stamp(2, 1, vt=(118,119,1))}
    s_barrier                               ; b0
{stamp(2, 2, vt=(118,119,1))}""")
    a(rdK1(1)); a(rdK2(1))
    a("    s_waitcnt lgkmcnt(0)")
    a(qk1(SB)); a(qk2(SB))
    a(rdK1(0)); a(rdK2(0))
    a("    s_waitcnt lgkmcnt(0)")
    a(qk1(SA)); a(qk2(SA))
    max16(a, MREG, SB, True)
    max16(a, MREG, SA, False)
    a(f"""    v_mov_b32 v{T0}, v{MREG}
    v_permlane32_swap_b32 v{MREG}, v{T0}
    v_max_f32 v{MREG}, v{MREG}, v{T0}
    v_ceil_f32 v{MREG}, v{MREG}
    v_add_f32 v{MREG}, {hx(f2u(float(MARGIN)))}, v{MREG}""")
    pack_m(a, MREG)
    a(qk1(SA)); a(qk2(SA))
    a(rdK1(1)); a(rdV1(7).replace(f"offset:{off(7)+1920}", f"offset:{off(7)+1920}") if False else "")
    a(rdK2(1)); a(rdV0(0))
    a(f"""    s_mov_b32 s44, 0
    s_mov_b32 s45, 8
    s_mov_b32 s46, 0
    s_mov_b32 s47, {hx(f2u(2.0**TRIG))}
    s_waitcnt lgkmcnt(0)
    s_nop 7
.p2align 4
K2_AL:""")
    for t in range(8):
        cur, nxt = (SA, SB) if t % 2 == 0 else (SB, SA)
        ex = lambda i: a(f"    v_exp_f32 v{cur+i}, v{cur+i}")
        cv = lambda i: a(f"    v_cvt_pk_bf16_f32 v{P+i}, v{cur+2*i}, v{cur+2*i+1}")
        if t == 6:
            a(f"""    s_add_u32 s44, s44, 1
    s_cmp_eq_u32 s44, 3
    s_cselect_b32 s48, {hx(-2*SLOT)}, {SLOT}
    s_cselect_b32 s44, 0, s44
    v_add_u32 v{AK1}, s48, v{AK1}
    v_add_u32 v{AK2}, s48, v{AK2}
    v_add_u32 v{AK2+1}, s48, v{AK2+1}
    s_barrier""")
        if t == 7:
            a(f"    v_add_u32 v{AV0}, s48, v{AV0}")
            a(f"    v_add_u32 v{AV0+1}, s48, v{AV0+1}")
        a("    s_waitcnt lgkmcnt(2)")
        a(qk1(nxt)); a(rdK1((t+2) % 8))
        for i in range(5): ex(i)
        if t in (1, 5):
            a(f"""    v_cmp_lt_f32 vcc, s47, abs(v{O+8})
    s_cbranch_vccnz K2_RC{t}
K2_RCB{t}:""")
        a(pv2); a(rdV1(t))
        for i in range(5, 8): ex(i)
        for i in range(4): cv(i)
        a("    s_waitcnt lgkmcnt(2)")
        a(qk2(nxt)); a(rdK2((t+2) % 8))
        for i in range(8, 13): ex(i)
        if t in (2, 6):
            a(f"""    s_cmp_lg_u32 s46, 0
    s_cbranch_scc1 K2_RS{t}
K2_RSB{t}:""")
        a(pv1); a(rdV0((t+1) % 8))
        for i in range(13, 16): ex(i)
        for i in range(4, 8): cv(i)
        if t == 7:
            a(f"    v_add_u32 v{AV1}, s48, v{AV1}")
            a(f"    v_add_u32 v{AV1+1}, s48, v{AV1+1}")
    a(f"""    s_sub_u32 s45, s45, 1
    s_cmp_lg_u32 s45, 0
    s_cbranch_scc1 K2_AL
    s_waitcnt lgkmcnt(0)""")
    a(pv2)
    a(stamp(2, 3, vt=(118,119,1)))
    a(f"""K2_ATT_FIN:
    s_nop 15
    v_mov_b32 v{T0}, v{O+8}
    v_mov_b32 v{T0+1}, v{O+8}
    v_permlane32_swap_b32 v{T0}, v{T0+1}
    s_cmp_lg_u32 s45, 0
    s_cbranch_scc1 K2_ATT_OK
    v_mov_b32 v{T0+2}, v{T0+1}""")
    for r in range(0, 12, 2):
        a(f"    v_max3_f32 v{T0+2}, v{T0+2}, abs(v{O+r}), abs(v{O+r+1})")
    a(f"""    v_add_f32 v{T0+3}, v{O}, v{O+1}""")
    for r in range(2, 12):
        a(f"    v_add_f32 v{T0+3}, v{T0+3}, v{O+r}")
    a(f"""    s_mov_b32 s50, {hx(f2u(2.0**120))}
    s_mov_b32 s51, {hx(f2u(2.0**-100))}
    v_cmp_ngt_f32 vcc, s50, v{T0+2}
    s_cbranch_vccnz K2_SLOW
    v_cmp_u_f32 vcc, v{T0+3}, v{T0+3}
    s_cbranch_vccnz K2_SLOW
    v_cmp_nlt_f32 vcc, s51, v{T0+1}
    s_cbranch_vccnz K2_SLOW""")
    if FORCE_SLOW: a("    s_branch K2_SLOW")
    a(f"""K2_ATT_OK:
    v_rcp_f32 v{T0+1}, v{T0+1}
    s_lshl_b32 s50, s40, 1
    s_mul_i32 s50, s50, {44*1024}
    s_add_u32 s50, s50, {hx(WS_OU)}
    s_lshr_b32 s51, s36, 1
    s_lshl_b32 s51, s51, 10
    s_and_b32 s52, s36, 1
    s_lshl_b32 s53, s52, 9
    s_add_u32 s51, s51, s53
    s_add_u32 s51, s51, s50
    s_lshr_b32 s53, s36, 3
    s_add_u32 s53, s53, 16
    s_lshl_b32 s53, s53, 10
    s_bfe_u32 s54, s36, 0x20001
    s_lshl_b32 s54, s54, 8
    s_add_u32 s53, s53, s54
    s_lshl_b32 s54, s52, 3
    s_add_u32 s53, s53, s54
    s_add_u32 s53, s53, s50
    v_bfe_u32 v5, v2, 4, 1
    v_mul_u32_u24 v5, {44*1024}, v5
    v_and_b32 v6, 15, v2
    v_lshl_add_u32 v5, v6, 4, v5
    v_lshrrev_b32 v6, 5, v2
    v_lshl_add_u32 v6, v6, 8, v5""")
    for r in range(12): a(f"    v_mul_f32 v{O+r}, v{O+r}, v{T0+1}")
    for r in range(6): a(f"    v_cvt_pk_bf16_f32 v{O+r}, v{O+2*r}, v{O+2*r+1}")
    a(f"""    buffer_store_dwordx4 {vr(O,4)}, v6, s[16:19], s51 offen
    s_mov_b32 exec_hi, 0
    buffer_store_dwordx2 {vr(O+4,2)}, v5, s[16:19], s53 offen""")
    if DIAG:
        a("    s_mov_b32 exec_hi, -1\n    s_waitcnt vmcnt(0)")
        a(stamp(2, 4, vt=(118,119,1)))
    a("    s_endpgm")
    for t in (1, 5):
        a(f"""K2_RC{t}:
    v_mov_b32 v{T0+4}, v{O+8}
    v_mov_b32 v{T0+5}, v{O+8}
    v_permlane32_swap_b32 v{T0+4}, v{T0+5}    ; T0+5 = l
    v_frexp_exp_i32_f32 v{T0+4}, v{T0+5}
    v_add_u32 v{T0+4}, {MARGIN}, v{T0+4}
    v_max_i32 v{T0+4}, 0, v{T0+4}
    v_cvt_f32_i32 v{T0+4}, v{T0+4}
    v_mov_b32 v{T0+6}, v{MREG}
    v_add_f32 v{MREG}, v{MREG}, v{T0+4}""")
        pack_m(a, MREG)
        a(f"""    v_sub_f32 v{T0+6}, v{T0+6}, v{MREG}
    v_cvt_i32_f32 v{EREG}, v{T0+6}
    s_mov_b32 s46, 1
    s_branch K2_RCB{t}""")
    for t in (2, 6):
        a(f"K2_RS{t}:")
        for r in range(12): a(f"    v_ldexp_f32 v{O+r}, v{O+r}, v{EREG}")
        a(f"""    s_mov_b32 s46, 0
    s_branch K2_RSB{t}""")
    a(f"""K2_SLOW:
    v_cndmask_b32 v{Q2}, v{Q2}, 0, s[60:61]
    v_lshlrev_b32 v{AK1}, 4, v2
    v_and_b32 v3, 31, v2
    v_lshlrev_b32 v{AK2}, 3, v3
    v_lshrrev_b32 v4, 5, v2
    v_min_u32 v5, 19, v3
    v_mad_u32_u24 v5, v4, 20, v5
    v_lshlrev_b32 v{AV0}, 4, v5
    v_mov_b32 v5, 0x3f803f80
    v_cndmask_b32 v{AV1}, 0, v5, s[64:65]
    v_mov_b32 v{MREG}, 0xff800000
    s_mul_i32 s50, s36, {64*2560}
    s_add_u32 s50, s50, {hx(WS_KV)}
    s_mov_b32 s45, 64""")
    for r in range(16): a(f"    v_mov_b32 v{O+r}, 0")
    a(f"""K2_SL:
    buffer_load_dwordx4 {vr(K1F,4)}, v{AK1}, s[16:19], s50 offen
    buffer_load_dwordx2 {vr(K2F,2)}, v{AK2}, s[16:19], s50 offen offset:1024
    buffer_load_dwordx4 {vr(V0F,4)}, v{AV0}, s[16:19], s50 offen offset:1280
    buffer_load_dwordx4 {vr(V1F,4)}, v{AV0}, s[16:19], s50 offen offset:1920
    s_waitcnt vmcnt(0)""")
    a(qk1(SA)); a(qk2(SA))
    for r in range(8): a(f"    v_cndmask_b32 v{V0F+r}, v{AV1}, v{V0F+r}, s[62:63]")
    max16(a, T0, SA, True)
    a(f"""    v_mov_b32 v{T0+1}, v{T0}
    v_permlane32_swap_b32 v{T0}, v{T0+1}
    v_max3_f32 v{T0}, v{T0}, v{T0+1}, v{MREG}   ; m_new
    v_sub_f32 v{T0+1}, v{MREG}, v{T0}
    v_exp_f32 v{T0+1}, v{T0+1}
    v_mov_b32 v{MREG}, v{T0}""")
    for r in range(16): a(f"    v_sub_f32 v{SA+r}, v{SA+r}, v{T0}")
    for r in range(16): a(f"    v_exp_f32 v{SA+r}, v{SA+r}")
    for r in range(12): a(f"    v_mul_f32 v{O+r}, v{O+r}, v{T0+1}")
    for r in range(8): a(f"    v_cvt_pk_bf16_f32 v{P+r}, v{SA+2*r}, v{SA+2*r+1}")
    a(pv1); a(pv2)
    a(f"""    s_add_u32 s50, s50, 2560
    s_sub_u32 s45, s45, 1
    s_cmp_lg_u32 s45, 0
    s_cbranch_scc1 K2_SL
    s_mov_b32 s45, 1
    s_branch K2_ATT_FIN""")

def gemm(a):
    ACC = 16
    ZF = 112
    WF = 160
    a(f"""K2_GEMM:
    s_setprio 3
    s_sub_u32 s40, s33, 8                   ; gw
    v_lshlrev_b32 v3, 4, v2                 ; lane*16
    s_mul_i32 s41, s36, {64*2560}
    s_mul_i32 s42, s40, 5120
    s_add_u32 s41, s41, s42
    s_add_u32 s41, s41, {hx(WS_KV)}
    s_mul_i32 s42, s40, {PAIR}
    s_add_u32 s42, s42, {KVO}
    s_mov_b32 s43, 0""")
    def kv_issue():
        a(f"""    s_add_u32 m0, s42, s43
    s_add_u32 s50, s41, 4096
    buffer_load_dwordx4 v3, s[16:19], s41 offen lds
    buffer_load_dwordx4 v3, s[16:19], s41 offen offset:1024 lds
    buffer_load_dwordx4 v3, s[16:19], s41 offen offset:2048 lds
    buffer_load_dwordx4 v3, s[16:19], s41 offen offset:3072 lds
    s_add_u32 m0, m0, 4096
    s_add_u32 s41, s41, 20480
    buffer_load_dwordx4 v3, s[16:19], s50 offen lds
    s_add_u32 s43, s43, {SLOT}
    s_cmp_eq_u32 s43, {3*SLOT}
    s_cselect_b32 s43, 0, s43""")
    kv_issue()
    a(f"""    ; w_sp voffsets v4 (even m) v5 (odd m)
    v_lshrrev_b32 v6, 3, v2
    v_lshlrev_b32 v6, 12, v6
    v_lshrrev_b32 v7, 4, v2
    v_and_b32 v8, 7, v2
    v_xor_b32 v7, v7, v8
    v_lshl_add_u32 v4, v7, 4, v6
    v_xor_b32 v5, 64, v4
    s_lshl_b32 s44, s36, 18                 ; tb*64*4096
    s_lshl_b32 s45, s40, 7
    s_add_u32 s44, s44, s45
    s_lshl_b32 s45, s40, 14
    s_add_u32 s45, s45, {WSP_OFF}
    s_mov_b32 s46, 0
    s_mul_i32 s47, s37, {128*3072}
    s_mul_i32 s48, s40, {4*3072}
    s_add_u32 s47, s47, s48
    s_add_u32 s47, s47, {hx(WS_Z2)}         ; z2 soffset""")
    def w_issue():
        a("    s_add_u32 s51, s45, s46")
        for m in range(8):
            a(f"    s_add_u32 m0, s51, {m*1024}")
            a(f"    s_add_u32 s50, s44, {m*8*4096}")
            a(f"    buffer_load_dwordx4 v{4+(m&1)}, s[8:11], s50 offen lds")
        a("    s_add_u32 s44, s44, 512")
        a("    s_xor_b32 s46, s46, 8192")
    def z_issue(js):
        for ft in range(3):
            a(f"    buffer_load_dwordx4 {vr(ZF+js*12+ft*4,4)}, v3, s[16:19], s47 offen offset:{ft*1024}")
        a(f"    s_add_u32 s47, s47, {3072 if js < 3 else 3072 + 12*3072}")
    w_issue()
    for js in range(4): z_issue(js)
    a(f"""    v_and_b32 v6, 31, v2
    v_lshrrev_b32 v7, 5, v2
    v_bfe_u32 v12, v2, 1, 3
    v_xor_b32 v12, v12, v7
    v_lshlrev_b32 v12, 4, v12
    v_lshl_add_u32 v12, v6, 7, v12
    v_add_u32 v12, s45, v12""")
    for js in range(4): a(f"    v_xor_b32 v{8+js}, {js*32}, v12")
    for r in range(96): a(f"    v_mov_b32 v{ACC+r}, 0")
    a(f"""    s_waitcnt vmcnt(20)
    s_barrier                               ; b0
    s_mov_b32 s49, 7""")
    def period(kv, nxt, label=None):
        if kv: kv_issue()
        if nxt: w_issue()
        base = (5 if kv else 0) + (8 if nxt else 0)
        for js in range(4):
            cnt = base + (3-js)*3 + (js*3 if nxt else 0)
            a(f"    s_waitcnt vmcnt({cnt})")
            a(f"    ds_read_b128 {vr(WF,4)}, v{8+js}")
            a(f"    ds_read_b128 {vr(WF+4,4)}, v{8+js} offset:4096")
            for tt in range(2):
                a(f"    s_waitcnt lgkmcnt({1-tt})")
                for ft in range(3):
                    c = vr(ACC+(tt*3+ft)*16, 16)
                    a(f"    v_mfma_f32_32x32x16_bf16 {c}, {vr(ZF+js*12+ft*4,4)}, {vr(WF+4*tt,4)}, {c}")
            if nxt: z_issue(js)
        for js in range(4): a(f"    v_xor_b32 v{8+js}, 8192, v{8+js}")
        if kv: a("    s_waitcnt vmcnt(20)")
        a("    s_barrier")
    a("K2_GL:")
    period(True, True)
    a("""    s_sub_u32 s49, s49, 1
    s_cmp_lg_u32 s49, 0
    s_cbranch_scc1 K2_GL""")
    period(False, False)
    a(stamp(2, 5, vt=(14,15,1)))
    a(f"""    s_mul_i32 s50, s40, 24576
    s_add_u32 s50, s50, {WSP_OFF}
    v_add_u32 v4, s50, v3""")
    Z1R = ZF; BR = ZF + 12
    for e in range(3):
        a(f"""    s_mul_i32 s52, s40, 3
    s_add_u32 s52, s52, {e}                 ; ht
    s_lshr_b32 s53, s52, 1                  ; tile
    s_and_b32 s54, s52, 1                   ; p
    s_cmp_ge_u32 s53, 3
    s_cselect_b32 s55, 1, 0                 ; tt
    s_cselect_b32 s56, 3, 0
    s_sub_u32 s56, s53, s56                 ; ft
    s_lshl_b32 s57, s36, 1
    s_add_u32 s57, s57, s55                 ; stile
    s_mul_i32 s58, s37, 3
    s_add_u32 s58, s58, s56                 ; ntile
    s_mul_i32 s59, s57, 24
    s_add_u32 s59, s59, s58
    s_lshl_b32 s59, s59, 1
    s_add_u32 s59, s59, s54
    s_lshl_b32 s59, s59, 10
    s_add_u32 s59, s59, {hx(WS_Z1)}
    buffer_load_dwordx4 {vr(Z1R+4*e,4)}, v3, s[16:19], s59 offen
    s_lshl_b32 s59, s57, 6
    v_lshlrev_b32 v5, 1, v6
    buffer_load_ushort v{BR+e}, v5, s[12:15], s59 offen
    s_mul_i32 s59, s57, {2*44}
    s_add_u32 s59, s59, s58
    s_add_u32 s59, s59, 20
    s_lshl_b32 s59, s59, 10
    s_lshl_b32 s54, s54, 9
    s_add_u32 s59, s59, s54
    s_add_u32 s{64+e}, s59, {hx(WS_OU)}""")
    for r in range(24):
        a(f"    ds_write_b128 v4, {vr(ACC+4*r,4)} offset:{r*1024}")
    a(f"""    s_mul_i32 s50, s40, {3*2048}
    s_add_u32 s50, s50, {WSP_OFF}
    v_add_u32 v4, s50, v3
    v_add_u32 v5, {2*24576}, v4
    v_bfe_u32 v8, v2, 4, 1
    v_mul_u32_u24 v8, {44*1024}, v8
    v_and_b32 v9, 15, v2
    v_lshl_add_u32 v8, v9, 4, v8
    v_lshl_add_u32 v8, v7, 8, v8
    s_waitcnt lgkmcnt(0)
    s_barrier""")
    for e in range(3):
        r0 = ACC + e*32
        for w in range(4):
            for q in range(2):
                a(f"    ds_read_b128 {vr(r0+w*8+q*4,4)}, v{4+(w>>1)} offset:{(w&1)*24576 + e*2048 + q*1024}")
        a("    s_waitcnt vmcnt(0) lgkmcnt(0)")
        for i in range(8):
            a(f"    v_add_f32 v{r0+i}, v{r0+i}, v{r0+8+i}")
            a(f"    v_add_f32 v{r0+16+i}, v{r0+16+i}, v{r0+24+i}")
        a(f"    v_lshlrev_b32 v{BR+e}, 16, v{BR+e}")
        for i in range(8):
            a(f"    v_add3_f32 v0, v0, v0, v0" if False else f"    v_add_f32 v{r0+i}, v{r0+i}, v{r0+16+i}")
        for i in range(4):
            a(f"    v_lshlrev_b32 v{r0+8+2*i}, 16, v{Z1R+4*e+i}")
            a(f"    v_and_b32 v{r0+9+2*i}, 0xffff0000, v{Z1R+4*e+i}")
        for i in range(8):
            a(f"    v_add_f32 v{r0+i}, v{r0+i}, v{BR+e}")
        for i in range(8):
            a(f"    v_mul_f32 v{r0+i}, v{r0+i}, v{r0+8+i}")
        for i in range(4):
            a(f"    v_cvt_pk_bf16_f32 v{r0+i}, v{r0+2*i}, v{r0+2*i+1}")
        a(f"    buffer_store_dwordx4 {vr(r0,4)}, v8, s[16:19], s{64+e} offen")
    if DIAG: a("    s_waitcnt vmcnt(0)")
    a(stamp(2, 6, vt=(14,15,1)))
    a("    s_endpgm")

def gen_k2(a):
    a(f""".p2align 8
.type k2_kernel,@function
k2_kernel:
    s_cmp_ge_u32 s2, 256
    s_cbranch_scc1 K2_END
    s_load_dwordx4 s[4:7], s[0:1], 40
    s_load_dwordx2 s[24:25], s[0:1], 80     ; ws
    v_lshrrev_b32 v1, 6, v0
    v_and_b32 v2, 63, v0
    v_readfirstlane_b32 s33, v1
    s_and_b32 s34, s2, 7
    s_lshr_b32 s35, s2, 3
    s_lshl_b32 s36, s34, 2
    s_and_b32 s37, s35, 3
    s_add_u32 s36, s36, s37
    s_lshr_b32 s37, s35, 2
    s_waitcnt lgkmcnt(0)
{srd(16, 24, WS_END)}
{srd(8, 4, 2048*4096)}
{srd(12, 6, 4096)}
{stamp(2, 0, vt=(14,15,1))}
    s_cmp_ge_u32 s33, 8
    s_cbranch_scc1 K2_GEMM""")
    attention(a)
    gemm(a)
    a("K2_END:\n    s_endpgm")

KERNELS = [dict(name='ln2_kernel', gen=gen_ln2, grid=256, block=768, lds=1024, vgpr=64),
           dict(name='k2_kernel', gen=gen_k2, grid=256, block=768, lds=K2_LDS, vgpr=168)]
```

```python
from asmlib import Asm
from gen_common import *

RSTR = 336
PSZ = 64*RSTR
K3_LDS = 4*PSZ

def gen_k3(a):
    NK = 11
    DEPTH = 4
    ACC = 0 + 16
    FR = 96
    a(f""".p2align 8
.type k3_kernel,@function
k3_kernel:
    s_cmp_ge_u32 s2, 256
    s_cbranch_scc1 K3_END
    s_load_dwordx2 s[4:5], s[0:1], 0        ; x
    s_load_dwordx2 s[6:7], s[0:1], 64       ; out
    s_load_dwordx2 s[24:25], s[0:1], 80     ; ws
    v_lshrrev_b32 v1, 6, v0
    v_and_b32 v2, 63, v0
    v_readfirstlane_b32 s33, v1
    v_lshlrev_b32 v3, 4, v2
    s_and_b32 s34, s2, 7
    s_lshr_b32 s35, s2, 3
    s_lshl_b32 s36, s34, 2
    s_and_b32 s37, s35, 3
    s_add_u32 s36, s36, s37                 ; tb
    s_lshr_b32 s37, s35, 2                  ; ng
    s_mul_i32 s40, s36, {4*44*1024}
    s_lshl_b32 s41, s33, 10
    s_add_u32 s40, s40, s41
    s_add_u32 s40, s40, {hx(WS_OU)}
    s_add_u32 s41, s40, {44*1024}
    s_add_u32 s42, s40, {2*44*1024}
    s_add_u32 s43, s40, {3*44*1024}
    s_mul_i32 s44, s37, {44*5*1024}
    s_mul_i32 s45, s33, {5*1024}
    s_add_u32 s44, s44, s45
    s_add_u32 s44, s44, {hx(WS_WT)}         ; A base
    s_add_u32 s45, s44, 4096
    s_waitcnt lgkmcnt(0)
{srd(16, 24, WS_END)}
{srd(8, 4, 2048*1280)}
{srd(12, 6, 2048*1280)}
{stamp(3, 0, vt=(14,15,1))}""")
    def loads(i):
        b = FR + (i % DEPTH)*36
        for nt in range(5):
            so, off = (44, nt*1024) if nt < 4 else (45, 0)
            a(f"    buffer_load_dwordx4 {vr(b+4*nt,4)}, v3, s[16:19], s{so} offen offset:{off}")
            if nt < 4:
                a(f"    buffer_load_dwordx4 {vr(b+20+4*nt,4)}, v3, s[16:19], s{40+nt} offen")
        if i < NK-1:
            for r in (40, 41, 42, 43): a(f"    s_add_u32 s{r}, s{r}, 4096")
            for r in (44, 45): a(f"    s_add_u32 s{r}, s{r}, {4*5*1024}")
    for i in range(DEPTH): loads(i)
    a(f"""    s_mul_i32 s46, s36, {64*1280}
    s_mul_i32 s47, s37, 160
    s_add_u32 s46, s46, s47""")
    XR = FR + DEPTH*36
    for m in range(5):
        a(f"""    v_add_u32 v14, {256*m}, v0
    v_mul_u32_u24 v15, 3277, v14
    v_lshrrev_b32 v15, 16, v15              ; t
    v_mul_u32_u24 v{4+m}, 20, v15
    v_sub_u32 v14, v14, v{4+m}              ; nq
    v_mul_u32_u24 v{4+m}, 1280, v15
    v_lshl_add_u32 v{4+m}, v14, 3, v{4+m}
    v_mul_u32_u24 v{9+m}, {RSTR}, v15
    v_lshl_add_u32 v{9+m}, v14, 4, v{9+m}""")
    issued = DEPTH
    for i in range(NK):
        out_after = (issued - 1 - i)*9 + (5 if issued == NK and i > NK-1-DEPTH else 0)
        a(f"    s_waitcnt vmcnt({out_after})")
        if i == 0: a(stamp(3, 1, vt=(14,15,1)).replace("lgkmcnt(0)", "lgkmcnt(0)") if False else "")
        b = FR + (i % DEPTH)*36
        for nt in range(5):
            for tt in range(4):
                c = vr(ACC + (nt*4+tt)*4, 4)
                a(f"    v_mfma_f32_16x16x32_bf16 {c}, {vr(b+4*nt,4)}, {vr(b+20+4*tt,4)}, {c if i else 0}")
        if issued < NK:
            loads(issued); issued += 1
            if issued == NK:
                for m in range(5):
                    a(f"    buffer_load_dwordx2 {vr(XR+2*m,2)}, v{4+m}, s[8:11], s46 offen")
    a(stamp(3, 2, vt=(14,15,1)))
    a(f"""    v_and_b32 v14, 15, v2
    v_mul_u32_u24 v14, {RSTR}, v14
    v_lshrrev_b32 v15, 4, v2
    v_lshl_add_u32 v14, v15, 4, v14
    s_mul_i32 s47, s33, {PSZ}
    v_add_u32 v14, s47, v14""")
    for nt in range(5):
        for tt in range(4):
            a(f"    ds_write_b128 v14, {vr(ACC+(nt*4+tt)*4,4)} offset:{tt*16*RSTR + nt*64}")
    a("    s_waitcnt lgkmcnt(0)\n    s_barrier")
    R = FR
    for m in range(5):
        for w in range(4):
            if w*PSZ < 65536:
                a(f"    ds_read_b128 {vr(R+m*16+4*w,4)}, v{9+m} offset:{w*PSZ}")
    a("    s_waitcnt vmcnt(0)")
    for m in range(5):
        a(f"    s_waitcnt lgkmcnt({min(15, 4*(4-m))})")
        r = R + m*16
        for e in range(4):
            a(f"    v_add_f32 v{r+e}, v{r+e}, v{r+4+e}")
            a(f"    v_add_f32 v{r+8+e}, v{r+8+e}, v{r+12+e}")
        a(f"""    v_lshlrev_b32 v{r+4}, 16, v{XR+2*m}
    v_and_b32 v{r+5}, 0xffff0000, v{XR+2*m}
    v_lshlrev_b32 v{r+6}, 16, v{XR+2*m+1}
    v_and_b32 v{r+7}, 0xffff0000, v{XR+2*m+1}""")
        for e in range(4):
            a(f"    v_add_f32 v{r+e}, v{r+e}, v{r+8+e}")
        for e in range(4):
            a(f"    v_add_f32 v{r+e}, v{r+e}, v{r+4+e}")
        a(f"""    v_cvt_pk_bf16_f32 v{r}, v{r}, v{r+1}
    v_cvt_pk_bf16_f32 v{r+1}, v{r+2}, v{r+3}
    buffer_store_dwordx2 {vr(r,2)}, v{4+m}, s[12:15], s46 offen""")
    if DIAG: a("    s_waitcnt vmcnt(0)")
    a(stamp(3, 3, vt=(14,15,1)))
    a("K3_END:\n    s_endpgm")

KERNELS = [dict(name='k3_kernel', gen=gen_k3, grid=256, block=256, lds=K3_LDS, vgpr=256)]
```

```python
import sys
from asmlib import Asm
from gen_common import *
import gen_k1

HEADER = open('parallel_sum__softmax_full_mha__mixer_gmlp__prompt.s.ref').read().split('; Override launch')[0]

def build(kernels, path, verbose=False):
    launches = []
    body = Asm()
    kds = []
    for k in kernels:
        a = Asm()
        k['gen'](a)
        n = a.fix(verbose)
        body(a.text())
        launches.append(f"; @launch kernel={k['name']} grid=({k['grid']},1,1) block=({k['block']},1,1) lds={k['lds']}")
        kds.append(".p2align 6\n" + kd(k['name'], k['vgpr'], k.get('sgpr', 96), k.get('accum')))
    txt = HEADER + "\n".join(launches) + "\n" + '.amdgcn_target "amdgcn-amd-amdhsa--gfx950"\n.text\n' + body.text() + 'CODE_END:\n    s_endpgm\n' + '.section .rodata,"a"\n' + "".join(kds)
    open(path, 'w').write(txt)

KERNELS = [dict(name='k1_kernel', gen=gen_k1.gen_k1, grid=256, block=512, lds=gen_k1.K1_LDS, vgpr=256)]
try:
    import os, importlib
    gen_k2 = importlib.import_module(os.environ.get("K2MOD", "gen_k2"))
    KERNELS += gen_k2.KERNELS
    import gen_k3
    KERNELS += gen_k3.KERNELS
except ImportError as e:
    print("note:", e)

if __name__ == '__main__':
    out = sys.argv[1] if len(sys.argv) > 1 else 'parallel_sum__softmax_full_mha__mixer_gmlp__prompt.s'
    build(KERNELS, out, verbose='-v' in sys.argv)
    print("wrote", out)
```

```python
import math, struct
def hx(x): return '0x%x' % (x & 0xffffffff)
S = 2048; D = 640; H = 32; DH = 20; FH = 768
WS_Q   = 0
WS_KV  = WS_Q + 32*64*1280
WS_Z1  = WS_KV + 32*64*2560
WS_Y2  = WS_Z1 + 2048*768*2
WS_Z2  = WS_Y2 + 2048*768*2
WS_OU  = WS_Z2 + 2048*768*2
WS_WT  = WS_OU + 128*44*1024
WS_RS  = WS_WT + 8*44*5*1024
WS_CS  = WS_RS + 2048*8
WS_FLAG = WS_CS + 32*8*512
WS_DIAG = WS_FLAG + 4096
WS_END = WS_DIAG + 4*256*16*16*8
import os
DIAG = os.environ.get('DIAG', '0') == '1'
def stamp(kern, slot, wave_s=33, ws_srd=16, vt=(30, 31, 1)):
    if not DIAG: return ''
    return f"""    s_memrealtime s[88:89]
    s_memtime s[92:93]
    s_lshl_b32 s90, s2, 4
    s_add_u32 s90, s90, s{wave_s}
    s_lshl_b32 s90, s90, 7
    s_add_u32 s90, s90, {hx(WS_DIAG + kern*256*16*128 + slot*8)}
    s_waitcnt lgkmcnt(0)
    v_mov_b32 v{vt[0]}, s88
    v_mov_b32 v{vt[1]}, s92
    v_mov_b32 v{vt[2]}, 0
    buffer_store_dwordx2 v[{vt[0]}:{vt[1]}], v{vt[2]}, s[{ws_srd}:{ws_srd+3}], s90 offen"""
QSCALE = (DH ** -0.5) * math.log2(math.e)
def f2u(x): return struct.unpack('<I', struct.pack('<f', x))[0]
GELU_K1 = 2*math.sqrt(2/math.pi)*math.log2(math.e)
GELU_K2 = GELU_K1*0.044715

def kd(name, vgpr, sgpr=96, accum=None):
    if accum is None: accum = (vgpr + 3)//4*4
    return f""".amdhsa_kernel {name}
  .amdhsa_next_free_vgpr {vgpr}
  .amdhsa_next_free_sgpr {sgpr}
  .amdhsa_accum_offset {accum}
  .amdhsa_group_segment_fixed_size 0
  .amdhsa_kernarg_size 88
  .amdhsa_user_sgpr_count 2
  .amdhsa_user_sgpr_kernarg_segment_ptr 1
  .amdhsa_system_sgpr_workgroup_id_x 1
.end_amdhsa_kernel
"""
def vr(a, n): return f"v[{a}:{a+n-1}]" if n > 1 else f"v{a}"
def srd(a, base, size):
    return f"""    s_mov_b32 s{a}, s{base}
    s_mov_b32 s{a+1}, s{base+1}
    s_mov_b32 s{a+2}, {hx(size)}
    s_mov_b32 s{a+3}, 0x00020000"""

def allreduce32(a, r, t):
    a(f"""    v_add_f32_dpp v{r}, v{r}, v{r} quad_perm:[1,0,3,2] row_mask:0xf bank_mask:0xf
    v_add_f32_dpp v{r}, v{r}, v{r} quad_perm:[2,3,0,1] row_mask:0xf bank_mask:0xf
    v_add_f32_dpp v{r}, v{r}, v{r} row_half_mirror row_mask:0xf bank_mask:0xf
    v_add_f32_dpp v{r}, v{r}, v{r} row_mirror row_mask:0xf bank_mask:0xf
    v_mov_b32 v{t}, v{r}
    v_permlane16_swap_b32 v{r}, v{t}
    v_add_f32 v{r}, v{r}, v{t}""")

def stamp_dyn(kern, cnt_s, vt, wave_s=33, ws_srd=16):
    if os.environ.get('DIAG2', '0') != '1': return ''
    return f"""    s_memrealtime s[88:89]
    s_memtime s[92:93]
    s_lshl_b32 s90, s2, 4
    s_add_u32 s90, s90, s{wave_s}
    s_lshl_b32 s90, s90, 7
    s_lshl_b32 s91, s{cnt_s}, 3
    s_add_u32 s90, s90, s91
    s_add_u32 s{cnt_s}, s{cnt_s}, 1
    s_add_u32 s90, s90, {hx(WS_DIAG + kern*256*16*128 + 64)}
    s_waitcnt lgkmcnt(0)
    v_mov_b32 v{vt[0]}, s88
    v_mov_b32 v{vt[1]}, s92
    v_mov_b32 v{vt[2]}, 0
    buffer_store_dwordx2 v[{vt[0]}:{vt[1]}], v{vt[2]}, s[{ws_srd}:{ws_srd+3}], s90 offen"""
```

```python
from asmlib import Asm
from gen_common import *

STG = 49152
ST_OFF = 3*STG
CP_OFF = ST_OFF + 2560
K1_LDS = CP_OFF + 8192
NST = 10
PFCODE = '' if os.environ.get('NOPF') == '1' else '''    v_lshlrev_b32 v126, 7, v0
    v_min_u32 v126, CODE_END-k1_kernel-64, v126
    global_load_dword v127, v126, s[84:85]'''

def interleave(mfmas, reads, valus):
    out = []
    n = len(mfmas)
    ri = 0; vi = 0
    for m in range(n):
        out.append(mfmas[m])
        tgt = (len(reads)*(m+1) + n - 1)//n
        while ri < tgt:
            out.append(reads[ri]); ri += 1
        tgt = (len(valus)*(m+1))//n
        while vi < tgt:
            out.append(valus[vi]); vi += 1
    return out

def gelu_pairs(a, regs, t0):
    G = 4
    for g0 in range(0, len(regs), G):
        grp = regs[g0:g0+G]
        for i, r in enumerate(grp):
            t = t0 + 2*i
            a(f"    v_pk_mul_f32 {vr(t,2)}, {vr(r,2)}, {vr(r,2)}")
        for i, r in enumerate(grp):
            t = t0 + 2*i
            a(f"    v_pk_fma_f32 {vr(t,2)}, {vr(t,2)}, v[4:5], v[6:7]")
        for i, r in enumerate(grp):
            t = t0 + 2*i
            a(f"    v_pk_mul_f32 {vr(t,2)}, {vr(t,2)}, {vr(r,2)}")
        for i, r in enumerate(grp):
            t = t0 + 2*i
            a(f"    v_exp_f32 v{t}, v{t}")
            a(f"    v_exp_f32 v{t+1}, v{t+1}")
        for i, r in enumerate(grp):
            t = t0 + 2*i
            a(f"    v_pk_add_f32 {vr(t,2)}, {vr(t,2)}, 1.0 op_sel_hi:[1,0]")
        for i, r in enumerate(grp):
            t = t0 + 2*i
            a(f"    v_rcp_f32 v{t}, v{t}")
            a(f"    v_rcp_f32 v{t+1}, v{t+1}")
        for i, r in enumerate(grp):
            t = t0 + 2*i
            a(f"    v_pk_mul_f32 {vr(r,2)}, {vr(r,2)}, {vr(t,2)}")

def gen_k1(a):
    a(f""".p2align 8
.type k1_kernel,@function
k1_kernel:
    s_getpc_b64 s[84:85]
    s_cmp_ge_u32 s2, 256
    s_cbranch_scc1 K1_END
{PFCODE}
    s_load_dwordx4 s[4:7], s[0:1], 0        ; x, wqkv
    s_load_dwordx2 s[24:25], s[0:1], 16     ; wo
    s_load_dwordx2 s[26:27], s[0:1], 32     ; w_in
    s_load_dwordx2 s[28:29], s[0:1], 56     ; w_out
    s_load_dwordx4 s[68:71], s[0:1], 72
    v_lshrrev_b32 v1, 6, v0
    v_and_b32 v2, 63, v0                    ; lane
    v_readfirstlane_b32 s33, v1
    s_and_b32 s34, s2, 7                    ; xcd
    s_lshr_b32 s35, s2, 3                   ; j
    s_and_b32 s36, s34, 1
    s_lshl_b32 s36, s36, 2
    s_and_b32 s37, s35, 3
    s_add_u32 s36, s36, s37                 ; rb = 4a + (j&3)
    s_lshr_b32 s37, s35, 2                  ; jj
    s_lshr_b32 s38, s34, 1                  ; b
    s_lshl_b32 s38, s38, 2
    s_and_b32 s39, s37, 3
    s_add_u32 s38, s38, s39                 ; g = 4b + (jj&3)
    s_waitcnt lgkmcnt(0)
{srd(8, 4, 2048*1280)}
{srd(16, 70, WS_END)}
{srd(72, 68, 256)}
{stamp(0, 0)}
    s_cmp_lt_u32 s37, 4
    s_cselect_b32 s12, s6, s26
    s_cselect_b32 s13, s7, s27
    s_cselect_b32 s14, {hx(640*3840)}, {hx(640*3072)}
    s_mov_b32 s15, 0x00020000
    s_cmp_ge_u32 s33, 4
    s_cbranch_scc1 K1_PROD
    ; ---------------- consumers ----------------
    s_cmp_ge_u32 s37, 4
    s_cbranch_scc1 K1_CONS_Z
    s_cmp_eq_u32 s38, 15
    s_cbranch_scc1 K1_END
    s_cmp_ge_u32 s38, 10
    s_cbranch_scc1 K1_CONS_V
    s_branch K1_CONS_QK
K1_CONS_Z:
    s_cmp_ge_u32 s38, 8
    s_cbranch_scc1 K1_CONS_Z2
    s_branch K1_CONS_Z1
""")
    producer(a)
    consumer(a, 'QK')
    consumer(a, 'V')
    consumer(a, 'Z1')
    consumer(a, 'Z2')
    a("K1_END:\n    s_endpgm")

def rowstat_loads(a):
    a(f"""    s_lshr_b32 s76, s34, 1
    s_lshl_b32 s76, s76, 3
    s_add_u32 s77, s76, s37
    s_lshl_b32 s76, s77, 3
    s_lshl_b32 s78, s36, 8
    s_add_u32 s76, s76, s78
    s_lshl_b32 s78, s40, 1
    s_add_u32 s76, s76, s78                 ; row
    s_mul_i32 s78, s76, 1280
    v_lshrrev_b32 v58, 5, v2
    v_mul_u32_u24 v58, 1280, v58
    v_and_b32 v59, 31, v2
    v_lshl_add_u32 v60, v59, 4, v58
    v_lshl_add_u32 v61, v59, 3, v58
    buffer_load_dwordx4 v[48:51], v60, s[8:11], s78 offen
    buffer_load_dwordx4 v[52:55], v60, s[8:11], s78 offen offset:512
    buffer_load_dwordx2 v[56:57], v61, s[8:11], s78 offen offset:1024""")

def rowstat_compute(a):
    for i in range(10):
        a(f"    v_lshlrev_b32 v{100+2*i}, 16, v{48+i}")
        a(f"    v_and_b32 v{101+2*i}, 0xffff0000, v{48+i}")
    a("    v_add_f32 v58, v100, v101")
    a("    v_add_f32 v59, v102, v103")
    for i in range(4, 20, 2):
        a(f"    v_add_f32 v58, v58, v{100+i}")
        a(f"    v_add_f32 v59, v59, v{101+i}")
    a("    v_add_f32 v58, v58, v59")
    allreduce32(a, 58, 60)
    a(f"    v_mul_f32 v58, {hx(f2u(-1.0/640))}, v58      ; -mu")
    for i in range(20):
        a(f"    v_add_f32 v{100+i}, v58, v{100+i}")
    a("    v_mul_f32 v59, v100, v100")
    a("    v_mul_f32 v60, v101, v101")
    for i in range(2, 20, 2):
        a(f"    v_fmac_f32 v59, v{100+i}, v{100+i}")
        a(f"    v_fmac_f32 v60, v{101+i}, v{101+i}")
    a("    v_add_f32 v59, v59, v60")
    allreduce32(a, 59, 60)
    a(f"""    v_mov_b32 v60, {hx(f2u(1e-5))}
    v_fmac_f32 v60, {hx(f2u(1.0/640))}, v59
    v_rsq_f32 v59, v60
    v_lshrrev_b32 v61, 5, v2
    v_lshlrev_b32 v61, 3, v61
    s_lshl_b32 s78, s76, 3
    s_add_u32 s78, s78, {hx(WS_RS)}
    buffer_store_dwordx2 v[58:59], v61, s[16:19], s78 offen sc1""")

def send_flag(a):
    a("""    s_and_b32 s78, s2, 31
    s_lshl_b32 s78, s78, 3
    v_mov_b32 v58, 1
    v_mov_b32 v59, 0
    s_mov_b64 s[80:81], exec
    s_mov_b64 exec, 1
    buffer_atomic_add v58, v59, s[72:75], s78 offen sc1
    s_mov_b64 exec, s[80:81]""")

def producer(a):
    a(f"""K1_PROD:
    s_sub_u32 s40, s33, 4                   ; pw
    s_mov_b32 s82, 0
    v_mov_b32 v62, 0
    v_lshrrev_b32 v4, 3, v2                 ; l>>3
    v_mul_u32_u24 v3, 1280, v4
    v_lshrrev_b32 v5, 4, v2                 ; l>>4
    s_and_b32 s41, s40, 1
    s_lshl_b32 s41, s41, 2
    v_add_u32 v6, s41, v5
    v_and_b32 v7, 7, v2
    v_xor_b32 v6, v6, v7
    v_lshl_add_u32 v3, v6, 4, v3
    s_lshl_b32 s42, s36, 8
    s_lshl_b32 s43, s40, 3
    s_add_u32 s42, s42, s43
    s_mul_i32 s42, s42, 1280
    s_lshl_b32 s44, s40, 10
    s_cmp_ge_u32 s37, 4
    s_cbranch_scc1 K1_PROD_Z
    s_cmp_eq_u32 s38, 15
    s_cbranch_scc1 K1_PROD_WT_ONLY
""")
    for var in ('W128', 'W96'):
        if var == 'W96':
            a("K1_PROD_Z:")
        if var == 'W128':
            N = 12; RS = 3840
            a(f"""    v_mul_u32_u24 v8, 3840, v5              ; r*3840
    v_and_b32 v9, 15, v2
    v_lshlrev_b32 v10, 2, v5
    v_xor_b32 v9, v9, v10
    v_lshl_add_u32 v8, v9, 4, v8            ; W voffset
    s_mul_i32 s45, s40, {4*3840}
    s_lshl_b32 s46, s38, 8                  ; col0*2 = g*256
    s_add_u32 s45, s45, s46
    s_add_u32 s47, s44, 32768
""")
        else:
            N = 11; RS = 3072
            for e in range(3):
                a(f"""    v_add_u32 v11, {64*e}, v2
    v_mul_u32_u24 v12, 5462, v11
    v_lshrrev_b32 v12, 16, v12              ; row'
    v_mul_u32_u24 v13, 12, v12
    v_sub_u32 v13, v11, v13                 ; pos
    v_mul_u32_u24 v{8+e}, 3072, v12
    v_lshl_add_u32 v{8+e}, v13, 4, v{8+e}""")
            a(f"""    s_mul_i32 s45, s40, {16*3072}
    s_mul_i32 s46, s38, 192
    s_add_u32 s45, s45, s46
    s_mul_i32 s47, s40, 3072
    s_add_u32 s47, s47, 32768
""")
        def issue(slot_expr_s):
            a(f"    s_add_u32 s50, s44, s{slot_expr_s}")
            a(f"    s_add_u32 s51, s47, s{slot_expr_s}")
            for m in range(8):
                a(f"    s_add_u32 m0, s50, {m*4096}")
                a(f"    s_add_u32 s52, s42, {m*32*1280}")
                a(f"    buffer_load_dwordx4 v3, s[8:11], s52 offen lds")
                if var == 'W128' and m < 4:
                    a(f"    s_add_u32 m0, s51, {m*4096}")
                    a(f"    s_add_u32 s52, s45, {m*16*3840}")
                    a(f"    buffer_load_dwordx4 v8, s[12:15], s52 offen lds")
                if var == 'W96' and m < 3:
                    a(f"    s_add_u32 m0, s51, {m*1024}")
                    a(f"    buffer_load_dwordx4 v{8+m}, s[12:15], s45 offen lds")
            a(f"    s_add_u32 s42, s42, 128")
            a(f"    s_add_u32 s45, s45, {64*RS}")
        L = f"K1_PL_{var}"
        a(f"""    s_mov_b32 s48, 0
    s_mov_b32 s49, 0
{L}:""")
        issue(48)
        a(f"""    s_add_u32 s48, s48, {STG}
    s_cmp_eq_u32 s48, {3*STG}
    s_cselect_b32 s48, 0, s48
    s_add_u32 s49, s49, 1
    s_cmp_lt_u32 s49, 3
    s_cbranch_scc1 {L}
    s_cmp_gt_u32 s49, 4
    s_cbranch_scc1 {L}_B
    s_cmp_eq_u32 s49, 4
    s_cbranch_scc1 {L}_S""")
        rowstat_loads(a)
        a(f"""    s_mul_i32 s79, s36, 80
    s_mul_i32 s78, s40, 20
    s_add_u32 s79, s79, s78
    s_mul_i32 s79, s79, {RS}
    s_add_u32 s79, s79, s46
    v_mul_u32_u24 v62, {RS}, v5
    v_and_b32 v63, 15, v2
    v_lshl_add_u32 v62, v63, 4, v62""")
        for m in range(5):
            a(f"    buffer_load_dwordx4 {vr(64+4*m,4)}, v62, s[12:15], s79 offen")
            if m < 4: a(f"    s_add_u32 s79, s79, {4*RS}")
        a(f"""    s_waitcnt vmcnt({2*N+8})
    s_barrier                               ; bar 0
    s_waitcnt vmcnt({N+8})
    s_barrier                               ; bar 1
    s_branch {L}
{L}_S:
    s_waitcnt vmcnt({N})""")
        rowstat_compute(a)
        for e in range(4):
            a(f"    v_lshlrev_b32 v{100+2*e}, 16, v{64+e}")
            a(f"    v_and_b32 v{101+2*e}, 0xffff0000, v{64+e}")
        for m in range(1, 5):
            for e in range(4):
                a(f"    v_lshlrev_b32 v110, 16, v{64+4*m+e}")
                a(f"    v_and_b32 v111, 0xffff0000, v{64+4*m+e}")
                a(f"    v_add_f32 v{100+2*e}, v{100+2*e}, v110")
                a(f"    v_add_f32 v{101+2*e}, v{101+2*e}, v111")
        a(f"""    s_lshl_b32 s78, s40, 11
    s_add_u32 s78, s78, {CP_OFF}
    v_lshl_add_u32 v62, v2, 5, s78
    ds_write_b128 v62, v[100:103]
    ds_write_b128 v62, v[104:107] offset:16
    s_waitcnt lgkmcnt(0)
    s_barrier                               ; bar 2
    s_cmp_lg_u32 s40, 0
    s_cbranch_scc1 {L}
    v_lshlrev_b32 v62, 3, v2
    v_add_u32 v63, {CP_OFF}, v62""")
        for p in range(16):
            a(f"    ds_read_b64 {vr(64+2*p,2)}, v63 offset:{p*512}")
        for p in range(1, 16):
            if p == 1: a("    s_waitcnt lgkmcnt(8)")
            if p == 8: a("    s_waitcnt lgkmcnt(0)")
            a(f"    v_add_f32 v64, v64, v{64+2*p}")
            a(f"    v_add_f32 v65, v65, v{65+2*p}")
        a(f"""    s_lshl_b32 s78, s77, 3
    s_add_u32 s78, s78, s36
    s_lshl_b32 s78, s78, 9
    s_add_u32 s78, s78, {hx(WS_CS)}
    buffer_store_dwordx2 v[64:65], v62, s[16:19], s78 offen sc1
    s_branch {L}
{L}_B:
    s_cmp_eq_u32 s49, {NST}
    s_cbranch_scc1 {L}_T
    s_waitcnt vmcnt({N})
    s_barrier                               ; bar (s49-2)
    s_cmp_eq_u32 s49, {NST-1}
    s_cbranch_scc1 {L}_F
    s_cmp_lg_u32 s49, 5
    s_cbranch_scc1 {L}
    s_cmp_lg_u32 s40, 0
    s_cbranch_scc1 {L}""")
        send_flag(a)
        a(f"""    s_branch {L}
{L}_F:
    v_and_b32 v62, 31, v2
    v_lshlrev_b32 v62, 3, v62
    buffer_load_dword v63, v62, s[72:75], 0 offen sc1
    s_branch {L}
{L}_T:""")
        wt_loads(a, var)
        a(f"""    s_waitcnt vmcnt({N+16})
    s_barrier                               ; bar 8
    s_branch K1_PROD_TAIL""")
    a("K1_PROD_WT_ONLY:")
    rowstat_loads(a)
    wt_loads(a, 'only')
    a("    s_waitcnt vmcnt(16)")
    rowstat_compute(a)
    a("""    s_waitcnt vmcnt(0)
    s_barrier
    s_cmp_lg_u32 s40, 0
    s_cbranch_scc1 K1_WT_STORE""")
    send_flag(a)
    a(f"""    s_branch K1_WT_STORE
K1_POLL:
    s_add_u32 s82, s82, 1
    s_cmp_gt_u32 s82, 200000
    s_cbranch_scc1 K1_POLL_DONE
    s_sleep 2
    buffer_load_dword v63, v62, s[72:75], 0 offen sc1
    s_waitcnt vmcnt(0)
K1_PROD_TAIL:
    v_cmp_ne_u32 vcc, 8, v63
    s_cbranch_vccnz K1_POLL
K1_POLL_DONE:
    s_lshl_b32 s78, s36, 2
    s_add_u32 s78, s78, s40
    s_lshl_b32 s78, s78, 9
    s_add_u32 s78, s78, {hx(WS_RS)}
    v_lshlrev_b32 v62, 3, v2
    buffer_load_dwordx2 v[64:65], v62, s[16:19], s78 offen sc1
    s_lshl_b32 s78, s77, 12
    s_lshl_b32 s79, s40, 7
    s_add_u32 s78, s78, s79
    s_add_u32 s78, s78, {hx(WS_CS)}
    v_and_b32 v60, 31, v2
    v_lshlrev_b32 v60, 2, v60
    v_lshrrev_b32 v61, 5, v2
    v_lshl_add_u32 v61, v61, 11, v60
    buffer_load_dword v66, v61, s[16:19], s78 offen sc1
    buffer_load_dword v67, v61, s[16:19], s78 offen offset:512 sc1
    buffer_load_dword v68, v61, s[16:19], s78 offen offset:1024 sc1
    buffer_load_dword v69, v61, s[16:19], s78 offen offset:1536 sc1
    s_waitcnt vmcnt(5)
    s_barrier                               ; bar 9
    s_cmp_lt_u32 s38, 5
    s_cselect_b32 s79, {hx(f2u(QSCALE))}, 1.0
    s_cmp_lt_u32 s37, 4
    s_cselect_b32 s79, s79, 1.0
    s_lshl_b32 s78, s40, 8
    s_add_u32 s78, s78, {ST_OFF}
    v_lshl_add_u32 v62, v2, 2, s78
    s_lshl_b32 s78, s40, 7
    s_add_u32 s78, s78, {ST_OFF+2048}
    v_add_u32 v60, s78, v60
    s_waitcnt vmcnt(0)
    v_mul_f32 v65, s79, v65
    v_add_f32 v66, v66, v67
    v_add_f32 v68, v68, v69
    v_add_f32 v66, v66, v68
    v_mov_b32 v67, v66
    v_permlane32_swap_b32 v66, v67
    v_add_f32 v66, v66, v67
    ds_write_b32 v62, v64
    ds_write_b32 v62, v65 offset:1024
    ds_write_b32 v60, v66
    s_waitcnt lgkmcnt(0)
    s_barrier                               ; bar 10
K1_WT_STORE:
    v_lshlrev_b32 v3, 4, v2
    v_lshl_or_b32 v20, v33, 16, v32
    v_lshl_or_b32 v21, v35, 16, v34
    v_lshl_or_b32 v22, v37, 16, v36
    v_lshl_or_b32 v23, v39, 16, v38
    buffer_store_dwordx4 v[20:23], v3, s[16:19], s60 offen
    s_cmp_ge_u32 s62, 1760
    s_cbranch_scc1 K1_END
    v_lshl_or_b32 v24, v41, 16, v40
    v_lshl_or_b32 v25, v43, 16, v42
    v_lshl_or_b32 v26, v45, 16, v44
    v_lshl_or_b32 v27, v47, 16, v46
    buffer_store_dwordx4 v[24:27], v3, s[16:19], s61 offen
    s_endpgm
""")

def wt_loads(a, tag):
    a(f"""    s_lshl_b32 s54, s2, 2
    s_add_u32 s54, s54, s40                 ; F1
    s_add_u32 s62, s54, 1024                ; F2
    v_lshrrev_b32 v14, 5, v2                ; g>>1
    v_bfe_u32 v15, v2, 4, 1                 ; g&1
    v_and_b32 v16, 15, v2
    v_lshlrev_b32 v16, 1, v16               ; n*2""")
    for idx, (F, dst, so) in enumerate(((54, 20, 60), (62, 24, 61))):
        a(f"""    s_mul_i32 s55, s{F}, 1639
    s_lshr_b32 s55, s55, 16                 ; kk = F/40
    s_mul_i32 s56, s55, 40
    s_sub_u32 s56, s{F}, s56                ; ntile
    s_mul_i32 s57, s56, 205
    s_lshr_b32 s57, s57, 10                 ; ng
    s_mul_i32 s58, s57, 5
    s_sub_u32 s58, s56, s58                 ; nt%5
    s_mul_i32 s{so}, s57, 44
    s_add_u32 s{so}, s{so}, s55
    s_mul_i32 s{so}, s{so}, 5
    s_add_u32 s{so}, s{so}, s58
    s_lshl_b32 s{so}, s{so}, 10
    s_add_u32 s{so}, s{so}, {hx(WS_WT)}
    s_sub_u32 s63, s55, 20
    s_lshl_b32 s63, s63, 5                  ; base
    s_mov_b32 s64, 16                       ; A
    s_mov_b32 s65, 4                        ; B
    s_mov_b32 s66, {8*1280}                 ; J*1280""")
        if idx == 0:
            a(f"""    s_sub_u32 s67, s55, 16
    s_mul_i32 s67, s67, 160
    s_add_u32 s67, s67, 16
    s_cmp_lt_u32 s55, 20
    s_cselect_b32 s63, s67, s63
    s_cselect_b32 s64, 80, s64
    s_cselect_b32 s65, 40, s65
    s_cselect_b32 s66, {20*1280}, s66
    s_cselect_b32 s20, s24, s28
    s_cselect_b32 s21, s25, s29
    s_cselect_b32 s22, {hx(640*1280)}, {hx(768*1280)}
    s_mov_b32 s23, 0x00020000
    s_mul_i32 s67, s55, 40
    s_cmp_lt_u32 s55, 16
    s_cselect_b32 s63, s67, s63
    s_cselect_b32 s64, 20, s64
    s_cselect_b32 s65, 4, s65
    s_cselect_b32 s66, {8*1280}, s66""")
        else:
            a(srd(20, 28, 768*1280))
        a(f"""    v_mul_u32_u24 v17, s64, v14
    v_mul_u32_u24 v18, s65, v15
    v_add3_u32 v17, v17, v18, s63
    v_mul_u32_u24 v17, 1280, v17
    s_lshl_b32 s67, s56, 5
    v_add3_u32 v17, v17, v16, s67""")
        for j in range(8):
            so2 = "0" if j < 4 else "s66"
            a(f"    buffer_load_ushort v{32 + idx*8 + j}, v17, s[20:23], {so2} offen offset:{(j&3)*1280}")

def consumer(a, typ):
    wide = typ in ('QK', 'V')
    ct = typ in ('QK', 'Z1')
    nS = 4 if wide else 2
    nN = 2 if wide else 3
    ACC = 128
    XF = 32; WF = 64
    XA = 8
    WA = 16
    SUM, SQ, CS, ONES = 20, 22, 24, 25
    SV = 96
    acc = lambda i, n: ACC + (i*nN + n)*16
    a(f"K1_CONS_{typ}:")
    a(f"""    v_and_b32 v3, 31, v2                    ; l&31
    v_lshrrev_b32 v4, 5, v2                 ; h
    v_bfe_u32 v5, v2, 1, 3                  ; (t>>1)&7
    v_xor_b32 v5, v5, v4
    v_lshlrev_b32 v5, 4, v5
    v_lshl_add_u32 v5, v3, 7, v5            ; t*128 + ((h^sw)*16)""")
    if wide:
        a(f"""    s_and_b32 s40, s33, 1                   ; mh
    s_lshr_b32 s41, s33, 1                  ; nh
    s_lshl_b32 s42, s40, 14
    s_lshl_b32 s43, s41, 13                 ; 2nh*4096
    s_add_u32 s44, s42, s43
    s_sub_u32 s45, s42, s43
    s_add_u32 s45, s45, 8192""")
        for js in range(4):
            a(f"    v_xor_b32 v6, {js*32}, v5")
            a(f"    v_add_u32 v{XA+js}, s44, v6")
            a(f"    v_add_u32 v{XA+4+js}, s45, v6")
        nXA = 8
        a(f"""    v_bfe_u32 v6, v2, 2, 2                  ; r
    v_and_b32 v7, 3, v2                     ; c
    v_bfe_u32 v26, v2, 4, 1                 ; nb
    s_lshl_b32 s46, s41, 1
    s_add_u32 s46, s46, s40
    v_xor_b32 v27, s46, v6                  ; B^r
    v_lshlrev_b32 v27, 6, v27
    v_lshl_add_u32 v27, v26, 5, v27
    v_lshl_add_u32 v27, v7, 3, v27
    v_lshl_add_u32 v28, v4, 3, v6           ; 8h + r
    v_lshl_add_u32 v27, v28, 8, v27
    v_add_u32 v{WA}, 32768, v27
    v_xor_b32 v{WA+1}, 64, v{WA}""")
        nWA = 2
        wrow = 256
    else:
        a(f"    s_lshl_b32 s44, s33, 13")
        for js in range(4):
            a(f"    v_xor_b32 v6, {js*32}, v5")
            a(f"    v_add_u32 v{XA+js}, s44, v6")
        nXA = 4
        a(f"""    v_bfe_u32 v6, v2, 2, 2                  ; r
    v_and_b32 v7, 3, v2                     ; c
    v_bfe_u32 v26, v2, 4, 1                 ; nb
    v_lshl_add_u32 v28, v4, 3, v6           ; 8h + r
    v_mul_u32_u24 v27, 192, v28
    v_lshl_add_u32 v27, v26, 5, v27
    v_lshl_add_u32 v27, v7, 3, v27
    v_add_u32 v27, 32768, v27
    s_cmp_eq_u32 s33, 3
    s_cselect_b32 s46, 0, s33               ; nt(0) = cw%3
    s_add_u32 s47, s46, 1
    s_cmp_eq_u32 s47, 3
    s_cselect_b32 s47, 0, s47               ; nt(1)
    s_add_u32 s48, s47, 1
    s_cmp_eq_u32 s48, 3
    s_cselect_b32 s48, 0, s48               ; nt(2)""")
        for n in range(3):
            a(f"    s_lshl_b32 s49, s{46+n}, 6")
            a(f"    v_add_u32 v{WA+n}, s49, v27")
        nWA = 3
        wrow = 192
    for r in range(ACC, ACC + nS*nN*16):
        a(f"    v_mov_b32 v{r}, 0")
    if typ == 'QK':
        a(f"""    s_cmp_ge_u32 s38, 5
    s_cselect_b32 s50, 5, 0
    s_sub_u32 s50, s38, s50                 ; g%5
    s_cmp_ge_u32 s38, 5
    s_cselect_b32 s51, {64*2560}, {64*1280}
    s_cselect_b32 s52, 2560, 1280
    s_cselect_b32 s53, {hx(WS_KV)}, {hx(WS_Q)}
    s_cselect_b32 s54, 1.0, {hx(f2u(QSCALE))}
    s_lshl_b32 s50, s50, 5""")
        for n in range(2):
            a(f"    s_xor_b32 s55, s46, {n}")
            a(f"    s_lshl_b32 s55, s55, 3")
            a(f"    s_add_u32 s55, s55, s50")
            for rg in range(4):
                d = SV + n*4 + rg
                a(f"""    v_add3_u32 v26, v4, s55, {2*rg}           ; Qn
    v_mul_u32_u24 v27, 205, v26
    v_lshrrev_b32 v27, 10, v27              ; head
    v_mul_u32_u24 v28, 5, v27
    v_sub_u32 v28, v26, v28                 ; q
    v_mul_lo_u32 v{d}, v27, s51
    v_lshrrev_b32 v29, 1, v28
    v_lshl_add_u32 v{d}, v29, 9, v{d}
    v_and_b32 v29, 1, v28
    v_lshl_add_u32 v{d}, v29, 3, v{d}
    v_lshrrev_b32 v29, 2, v28
    v_sub_u32 v29, 4, v29
    v_lshlrev_b32 v29, v29, v3
    v_add_u32 v{d}, v{d}, v29""")
    elif typ == 'V':
        a(f"""    s_sub_u32 s50, s38, 10
    s_lshl_b32 s50, s50, 7
    s_mov_b32 s51, {64*2560}
    s_mov_b32 s52, 2560
    s_mov_b32 s53, {hx(WS_KV + 1280)}
    s_mov_b32 s54, 1.0""")
        for n in range(2):
            d = SV + n
            a(f"""    s_xor_b32 s55, s46, {n}
    s_lshl_b32 s55, s55, 5
    s_add_u32 s55, s55, s50
    v_add_u32 v26, s55, v3                  ; n
    v_mul_u32_u24 v27, 3277, v26
    v_lshrrev_b32 v27, 16, v27              ; head
    v_mul_u32_u24 v28, 20, v27
    v_sub_u32 v28, v26, v28                 ; d
    v_mul_lo_u32 v{d}, v27, s51
    v_mad_u32_u24 v28, v4, 20, v28
    v_lshl_add_u32 v{d}, v28, 4, v{d}""")
    else:
        a(f"""    s_mov_b32 s54, 1.0
    v_lshlrev_b32 v{SV}, 4, v2""")

    def reads(js, buf):
        out = []
        xs = []
        for i in range(nS):
            areg = XA + js + (4 if (wide and i >= 2) else 0)
            xs.append(f"    ds_read_b128 {vr(XF+buf*16+4*i,4)}, v{areg} offset:{(i&1)*4096}")
        ws = []
        for n in range(nN):
            for sub in range(2):
                ws.append(f"    ds_read_b64_tr_b16 {vr(WF+buf*12+4*n+2*sub,2)}, v{WA+n} offset:{(16*js+4*sub)*wrow}")
        out = [xs[0]] + ws[:2] + xs[1:] + ws[2:]
        return out
    def mfmas(buf):
        out = []
        for n in range(nN):
            for i in range(nS):
                x = vr(XF+buf*16+4*i, 4); w = vr(WF+buf*12+4*n, 4); c = vr(acc(i, n), 16)
                if ct: out.append(f"    v_mfma_f32_32x32x16_bf16 {c}, {w}, {x}, {c}")
                else:  out.append(f"    v_mfma_f32_32x32x16_bf16 {c}, {x}, {w}, {c}")
        return out
    def stats(buf):
        out = []
        for e in range(4):
            for i in range(2):
                x = XF+buf*16+4*i+e
                out.append(f"    v_dot2c_f32_bf16 v{SUM+i}, v{x}, v{ONES}")
                out.append(f"    v_dot2c_f32_bf16 v{SQ+i}, v{x}, v{x}")
            out.append(f"    v_dot2c_f32_bf16 v{CS}, v{WF+buf*12+e}, v{ONES}")
        return out
    L = f"K1_CL_{typ}"
    a(f"""    s_mov_b32 s60, 0
    s_mov_b32 s61, {NST}
{stamp(0, 1)}
    s_barrier
{stamp(0, 2)}""")
    for r in reads(0, 0): a(r)
    a(f".p2align 4\n{L}:")
    for js in range(4):
        buf = js & 1
        a("    s_waitcnt lgkmcnt(0)")
        vals = []
        if js == 3:
            a("    s_barrier")
            rd = reads(0, 0)
        else:
            rd = reads(js+1, buf ^ 1)
        seq = interleave(mfmas(buf), rd, vals)
        if js == 2:
            seq.append(f"    s_add_u32 s60, s60, 1")
            seq.append(f"    s_cmp_eq_u32 s60, 3")
            seq.append(f"    s_cselect_b32 s62, {hx(-2*STG)}, {STG}")
            seq.append(f"    s_cselect_b32 s60, 0, s60")
            for r in list(range(XA, XA+nXA)) + list(range(WA, WA+nWA)):
                seq.append(f"    v_add_u32 v{r}, s62, v{r}")
        for s in seq: a(s)
    a(f"""    s_sub_u32 s61, s61, 1
    s_cmp_lg_u32 s61, 0
    s_cbranch_scc1 {L}
    s_waitcnt lgkmcnt(0)
{stamp(0, 3)}""")
    if wide:
        for i in range(4):
            a(f"""    s_lshl_b32 s55, s41, 1
    s_xor_b32 s55, s55, {i}
    s_lshl_b32 s56, s40, 2
    s_add_u32 s{64+i}, s55, s56""")
        for n in range(2):
            a(f"    s_xor_b32 s{70+n}, s46, {n}")
    else:
        for i in range(2):
            a(f"    s_lshl_b32 s55, s33, 1")
            a(f"    s_add_u32 s{64+i}, s55, {i}")
        for n in range(3):
            a(f"    s_mov_b32 s{70+n}, s{46+n}")
    if not wide:
        a(f"""    v_mov_b32 v4, {hx(f2u(-GELU_K2))}
    v_mov_b32 v5, {hx(f2u(-GELU_K2))}
    v_mov_b32 v6, {hx(f2u(-GELU_K1))}
    v_mov_b32 v7, {hx(f2u(-GELU_K1))}""")
    a("    v_lshrrev_b32 v29, 5, v2\n    v_lshlrev_b32 v29, 4, v29               ; h*16 bytes")
    LANE = 8
    PER = 32
    TMP = 80
    if ct:
        for i in range(nS):
            a(f"""    s_lshl_b32 s55, s{64+i}, 7
    s_add_u32 s55, s55, {ST_OFF}
    v_lshl_add_u32 v26, v3, 2, s55
    ds_read_b32 v{LANE+2*i}, v26
    ds_read_b32 v{LANE+2*i+1}, v26 offset:1024""")
        for n in range(nN):
            a(f"""    s_lshl_b32 s55, s{70+n}, 7
    s_add_u32 s55, s55, {ST_OFF+2048}
    v_add_u32 v27, s55, v29""")
            for rg in range(4):
                a(f"    ds_read_b128 {vr(PER+16*n+4*rg,4)}, v27 offset:{rg*32}")
        a("    s_waitcnt lgkmcnt(0)")
        for i in range(nS):
            if typ == 'QK':
                a(f"""    s_lshl_b32 s55, s36, 3
    s_add_u32 s55, s55, s{64+i}
    s_mul_i32 s55, s55, s52
    s_add_u32 s56, s55, s53""")
            for n in range(nN):
                c = acc(i, n)
                for p in range(8):
                    a(f"    v_pk_fma_f32 {vr(c+2*p,2)}, {vr(PER+16*n+2*p,2)}, {vr(LANE+2*i,2)}, {vr(c+2*p,2)} op_sel_hi:[1,0,1]")
                for p in range(8):
                    a(f"    v_pk_mul_f32 {vr(c+2*p,2)}, {vr(c+2*p,2)}, {vr(LANE+2*i,2)} op_sel:[0,1]")
                if typ == 'Z1':
                    gelu_pairs(a, [c+2*p for p in range(8)], TMP)
                for p in range(8):
                    a(f"    v_cvt_pk_bf16_f32 v{c+p}, v{c+2*p}, v{c+2*p+1}")
                if typ == 'QK':
                    for rg in range(4):
                        a(f"    buffer_store_dwordx2 {vr(c+2*rg,2)}, v{SV+4*n+rg}, s[16:19], s56 offen")
                else:
                    a(f"""    s_lshl_b32 s55, s36, 3
    s_add_u32 s55, s55, s{64+i}
    s_mul_i32 s55, s55, 24
    s_mul_i32 s56, s38, 3
    s_add_u32 s55, s55, s56
    s_add_u32 s55, s55, s{70+n}
    s_lshl_b32 s55, s55, 11
    s_add_u32 s56, s55, {hx(WS_Z1)}
    buffer_store_dwordx4 {vr(c,4)}, v{SV}, s[16:19], s56 offen
    buffer_store_dwordx4 {vr(c+4,4)}, v{SV}, s[16:19], s56 offen offset:1024""")
    else:
        for n in range(nN):
            a(f"""    s_lshl_b32 s55, s{70+n}, 7
    s_add_u32 s55, s55, {ST_OFF+2048}
    v_lshl_add_u32 v26, v3, 2, s55
    ds_read_b32 v{LANE+2*n}, v26""")
        for i in range(nS):
            a(f"""    s_lshl_b32 s55, s{64+i}, 7
    s_add_u32 s55, s55, {ST_OFF}
    v_add_u32 v27, s55, v29""")
            for rg in range(4):
                a(f"    ds_read_b128 {vr(PER+4*rg,4)}, v27 offset:{rg*32}")
                a(f"    ds_read_b128 {vr(PER+16+4*rg,4)}, v27 offset:{1024+rg*32}")
            a("    s_waitcnt lgkmcnt(0)")
            if typ == 'V':
                a(f"""    s_lshl_b32 s55, s36, 3
    s_add_u32 s55, s55, s{64+i}
    s_mul_i32 s55, s55, s52
    s_add_u32 s56, s55, s53""")
            for n in range(nN):
                c = acc(i, n)
                for p in range(8):
                    a(f"    v_pk_fma_f32 {vr(c+2*p,2)}, {vr(PER+2*p,2)}, {vr(LANE+2*n,2)}, {vr(c+2*p,2)} op_sel_hi:[1,0,1]")
                for p in range(8):
                    a(f"    v_pk_mul_f32 {vr(c+2*p,2)}, {vr(c+2*p,2)}, {vr(PER+16+2*p,2)}")
                if typ == 'Z2':
                    gelu_pairs(a, [c+2*p for p in range(8)], TMP)
                for p in range(8):
                    a(f"    v_cvt_pk_bf16_f32 v{c+p}, v{c+2*p}, v{c+2*p+1}")
                if typ == 'V':
                    a(f"    buffer_store_dwordx4 {vr(c,4)}, v{SV+n}, s[16:19], s56 offen")
                    a(f"    buffer_store_dwordx4 {vr(c+4,4)}, v{SV+n}, s[16:19], s56 offen offset:640")
                else:
                    for q in (0, 4):
                        a(f"    v_permlane32_swap_b32 v{c+q}, v{c+q+2}")
                        a(f"    v_permlane32_swap_b32 v{c+q+1}, v{c+q+3}")
                    a(f"""    s_lshl_b32 s55, s36, 3
    s_add_u32 s55, s55, s{64+i}
    s_lshl_b32 s55, s55, 1
    s_sub_u32 s56, s38, 8
    s_lshl_b32 s56, s56, 7
    s_add_u32 s55, s55, s56
    s_mul_i32 s55, s55, 3
    s_add_u32 s55, s55, s{70+n}
    s_lshl_b32 s55, s55, 10
    s_add_u32 s56, s55, {hx(WS_Y2)}
    buffer_store_dwordx4 {vr(c,4)}, v{SV}, s[16:19], s56 offen
    buffer_store_dwordx4 {vr(c+4,4)}, v{SV}, s[16:19], s56 offen offset:3072""")
    a(stamp(0, 4))
    if DIAG: a("    s_waitcnt vmcnt(0)")
    a(stamp(0, 5))
    a("    s_endpgm")
```

```python
from asmlib import Asm
from gen_common import *

PAIR = 5376
SLOT = 4*PAIR
WSP_OFF = 0
KVO = 4*24576
K2_LDS = KVO + 3*SLOT
FORCE_SLOW = os.environ.get('FORCE_SLOW', '0') == '1'
APRIO = eval(os.environ.get('APRIO', '{}'))
MARGIN = 30
TRIG = 30

def ln2_body(a, lds_off):
    a(f"""    v_lshrrev_b32 v4, 5, v0                 ; G = f-tile 0..23
    v_mul_u32_u24 v5, 43, v4
    v_lshrrev_b32 v5, 7, v5                 ; fg = G/3
    v_mul_u32_u24 v6, 3, v5
    v_sub_u32 v6, v4, v6                    ; ft
    v_mul_u32_u24 v5, {128*3}, v5
    v_add_u32 v5, v5, v6
    v_lshlrev_b32 v5, 10, v5
    v_and_b32 v6, 31, v0
    v_lshl_add_u32 v5, v6, 4, v5            ; voffset
    s_lshr_b32 s40, s2, 1
    s_mul_i32 s40, s40, 3072
    s_and_b32 s41, s2, 1
    s_lshl_b32 s41, s41, 9
    s_add_u32 s40, s40, s41
    s_add_u32 s41, s40, {hx(WS_Y2)}
    s_add_u32 s42, s40, {hx(WS_Z2)}
    buffer_load_dwordx4 v[8:11], v5, s[16:19], s41 offen
    s_waitcnt vmcnt(0)""")
    for e in range(4):
        a(f"    v_lshlrev_b32 v{16+2*e}, 16, v{8+e}")
        a(f"    v_and_b32 v{17+2*e}, 0xffff0000, v{8+e}")
    for e in range(8):
        a(f"    v_mov_b32 v{24+e}, v{16+e}")
        a(f"    v_mul_f32 v{32+e}, v{16+e}, v{16+e}")
    for e in range(8):
        a(f"    v_permlane32_swap_b32 v{24+e}, v{32+e}")
    for e in range(8):
        a(f"    v_add_f32 v{24+e}, v{24+e}, v{32+e}")
    for e in range(4):
        a(f"    v_permlane16_swap_b32 v{24+e}, v{28+e}")
    for e in range(4):
        a(f"    v_add_f32 v{24+e}, v{24+e}, v{28+e}")
    for pat in ("quad_perm:[1,0,3,2]", "quad_perm:[2,3,0,1]", "row_half_mirror", "row_mirror"):
        for e in range(4):
            a(f"    v_add_f32_dpp v{24+e}, v{24+e}, v{24+e} {pat} row_mask:0xf bank_mask:0xf")
    a(f"""    v_lshrrev_b32 v6, 4, v2
    v_lshlrev_b32 v6, 4, v6
    s_lshl_b32 s43, s33, 6
    s_add_u32 s43, s43, {lds_off}
    v_add_u32 v6, s43, v6
    ds_write_b128 v6, v[24:27]
    s_waitcnt lgkmcnt(0)
    s_barrier
    v_lshlrev_b32 v6, 2, v2
    v_add_u32 v6, {lds_off}, v6
    ds_read_b32 v24, v6
    ds_read_b32 v25, v6 offset:256
    ds_read_b32 v26, v6 offset:512
    s_waitcnt lgkmcnt(0)
    v_add_f32 v24, v24, v25
    v_add_f32 v24, v24, v26
    v_mov_b32 v25, v24
    v_permlane32_swap_b32 v24, v25
    v_add_f32 v24, v24, v25
    v_mov_b32 v25, v24
    v_permlane16_swap_b32 v24, v25
    v_add_f32 v24, v24, v25
    v_mov_b32_dpp v25, v24 row_ror:8 row_mask:0xf bank_mask:0xf
    v_mul_f32 v24, {hx(f2u(-1.0/768))}, v24
    v_mul_f32 v25, {hx(f2u(1.0/768))}, v25
    v_fma_f32 v25, -v24, v24, v25
    v_max_f32 v25, 0, v25
    v_add_f32 v25, {hx(f2u(1e-5))}, v25
    v_rsq_f32 v25, v25
    s_nop 0""")
    for e in range(8):
        a(f"    v_readlane_b32 s{44+e}, v24, {e}")
        a(f"    v_readlane_b32 s{52+e}, v25, {e}")
    for e in range(8):
        a(f"    v_add_f32 v{16+e}, s{44+e}, v{16+e}")
    for e in range(8):
        a(f"    v_mul_f32 v{16+e}, s{52+e}, v{16+e}")
    for e in range(4):
        a(f"    v_cvt_pk_bf16_f32 v{8+e}, v{16+2*e}, v{17+2*e}")

def gen_ln2(a):
    a(f""".p2align 8
.type ln2_kernel,@function
ln2_kernel:
    s_cmp_ge_u32 s2, 256
    s_cbranch_scc1 LN2_END
    s_load_dwordx2 s[24:25], s[0:1], 80
    v_lshrrev_b32 v1, 6, v0
    v_and_b32 v2, 63, v0
    v_readfirstlane_b32 s33, v1
    s_waitcnt lgkmcnt(0)
{srd(16, 24, WS_END)}
{stamp(1, 0, vt=(40,41,1))}""")
    ln2_body(a, 0)
    a("    buffer_store_dwordx4 v[8:11], v5, s[16:19], s42 offen")
    if DIAG: a("    s_waitcnt vmcnt(0)")
    a(stamp(1, 1, vt=(40,41,1)))
    a("LN2_END:\n    s_endpgm")

SA, SB = 16, 32
O = 48
P = 64
Q1, Q2 = 72, 76
K1F, K2F = 80, 84
V0F, V1F = 88, 92
AK1 = 96; AK2 = 97; AV0 = 99; AV1 = 101
MREG = 104
EREG = 105
T0 = 106

def pack_m(a, m, eff=True):
    a(f"""    v_sub_f32 v{T0}, 0, v{m}
    v_and_b32 v{T0+1}, 0xffff0000, v{T0}    ; hi
    v_sub_f32 v{T0}, v{T0}, v{T0+1}         ; lo
    v_cvt_pk_bf16_f32 v{T0+2}, v{T0+1}, v{T0}
    v_and_b32 v{T0}, 0xffff0000, v{T0+2}
    v_add_f32 v{T0}, v{T0}, v{T0+1}
    v_sub_f32 v{m}, 0, v{T0}
    v_cndmask_b32 v{Q2}, v{Q2}, v{T0+2}, s[60:61]""")

def max16(a, dst, s, first):
    if first:
        a(f"    v_max3_f32 v{dst}, v{s}, v{s+1}, v{s+2}")
        a(f"    v_max_f32 v{dst}, v{dst}, v{s+15}")
        rng = range(3, 15, 2)
    else:
        rng = range(0, 16, 2)
    for i in rng:
        a(f"    v_max3_f32 v{dst}, v{dst}, v{s+i}, v{s+i+1}")

def attention(a):
    off = lambda t: (t >> 1)*PAIR + (t & 1)*2560
    rdK1 = lambda t: f"    ds_read_b128 {vr(K1F,4)}, v{AK1} offset:{off(t)}"
    rdK2 = lambda t: f"    ds_read_b64 {vr(K2F,2)}, v{AK2+(t&1)} offset:{off(t)+1024}"
    rdV0 = lambda t: f"    ds_read_b128 {vr(V0F,4)}, v{AV0+(t&1)} offset:{off(t)+1280}"
    rdV1 = lambda t: f"    ds_read_b128 {vr(V1F,4)}, v{AV1+(t&1)} offset:{off(t)+1920}"
    qk1 = lambda s: f"    v_mfma_f32_32x32x16_bf16 {vr(s,16)}, {vr(K1F,4)}, {vr(Q1,4)}, 0"
    qk2 = lambda s: f"    v_mfma_f32_32x32x8_bf16 {vr(s,16)}, {vr(K2F,2)}, {vr(Q2,2)}, {vr(s,16)}"
    pv1 = f"    v_mfma_f32_32x32x16_bf16 {vr(O,16)}, {vr(V0F,4)}, {vr(P,4)}, {vr(O,16)}"
    pv2 = f"    v_mfma_f32_32x32x16_bf16 {vr(O,16)}, {vr(V1F,4)}, {vr(P+4,4)}, {vr(O,16)}"
    a(f"""K2_ATT:
    s_lshl_b32 s40, s37, 3
    s_add_u32 s40, s40, s33                 ; qt
    s_lshl_b32 s41, s36, 6
    s_add_u32 s41, s41, s40
    s_mul_i32 s41, s41, 1280                ; + WS_Q(=0)
    v_lshlrev_b32 v{AK1}, 4, v2
    v_and_b32 v3, 31, v2                    ; l&31
    v_lshrrev_b32 v4, 5, v2                 ; h
    v_lshlrev_b32 v5, 3, v3
    buffer_load_dwordx4 {vr(Q1,4)}, v{AK1}, s[16:19], s41 offen
    buffer_load_dwordx2 {vr(Q2,2)}, v5, s[16:19], s41 offen offset:1024
    s_mov_b32 s60, 0
    s_mov_b32 s61, -1
    v_mov_b32 v6, {5120+96-1024}
    v_cndmask_b32 v{AK2}, v5, v6, s[60:61]
    v_mov_b32 v6, {5120+96-1024-2560}
    v_cndmask_b32 v{AK2+1}, v5, v6, s[60:61]
    ; V address: d<20: (h*20+d)*16
    v_mad_u32_u24 v7, v4, 20, v3
    v_lshlrev_b32 v7, 4, v7
    v_cmp_gt_u32 s[62:63], 20, v3           ; d<20
    v_cmp_eq_u32 s[64:65], 20, v3           ; d==20
    v_cmp_lt_u32 s[66:67], 27, v3           ; d>=28""")
    for (reg, part, ones, z1, z2h0, z2h1) in ((AV0, 1280, 8, 9, 12, 1), (AV1, 1920, 0, 1, 4, 9)):
        a(f"""    v_mov_b32 v8, {z2h0*16}
    v_mov_b32 v9, {z2h1*16}
    v_cndmask_b32 v8, v8, v9, s[60:61]
    v_mov_b32 v9, {z1*16}
    v_cndmask_b32 v8, v9, v8, s[66:67]
    v_mov_b32 v9, {ones*16}
    v_cndmask_b32 v8, v8, v9, s[64:65]
    v_add_u32 v9, {5120-part}, v8
    v_cndmask_b32 v{reg}, v9, v7, s[62:63]
    v_add_u32 v9, {5120-part-2560}, v8
    v_cndmask_b32 v{reg+1}, v9, v7, s[62:63]""")
    a(f"""    s_cmp_ge_u32 s33, 3
    s_cbranch_scc1 K2_ATT_NOPAD
    v_and_b32 v8, 15, v2
    v_lshrrev_b32 v9, 4, v2
    v_mul_u32_u24 v9, {PAIR}, v9
    v_lshl_add_u32 v9, v8, 4, v9
    s_mul_i32 s42, s33, {SLOT}
    s_add_u32 s42, s42, {5120+KVO}
    v_add_u32 v9, s42, v9
    v_and_b32 v10, 7, v2
    v_cmp_eq_u32 vcc, 0, v10
    v_mov_b32 v11, 0x3f803f80
    v_cndmask_b32 v13, 0, v11, vcc
    v_mov_b32 v14, v13
    v_mov_b32 v15, v13
    v_cmp_eq_u32 vcc, 6, v8
    v_cndmask_b32 v12, v13, v11, vcc
    ds_write_b128 v9, v[12:15]
K2_ATT_NOPAD:""")
    for r in range(AK1, AV1+2): a(f"    v_add_u32 v{r}, {KVO}, v{r}")
    for r in range(16): a(f"    v_mov_b32 v{O+r}, 0")
    for r in range(4): a(f"    v_mov_b32 v{P+4+r}, 0")
    for r in range(4): a(f"    v_mov_b32 v{V1F+r}, 0")
    a(f"""    s_waitcnt vmcnt(0) lgkmcnt(0)
    v_cndmask_b32 v{Q2}, v{Q2}, 0, s[60:61]
    v_cndmask_b32 v{Q2+1}, v{Q2+1}, 0, s[60:61]
{stamp(2, 1, vt=(118,119,1))}
    s_barrier                               ; b0
{stamp(2, 2, vt=(118,119,1))}""")
    a(rdK1(1)); a(rdK2(1))
    a("    s_waitcnt lgkmcnt(0)")
    a(qk1(SB)); a(qk2(SB))
    a(rdK1(0)); a(rdK2(0))
    a("    s_waitcnt lgkmcnt(0)")
    a(qk1(SA)); a(qk2(SA))
    max16(a, MREG, SB, True)
    max16(a, MREG, SA, False)
    a(f"""    v_mov_b32 v{T0}, v{MREG}
    v_permlane32_swap_b32 v{MREG}, v{T0}
    v_max_f32 v{MREG}, v{MREG}, v{T0}
    v_ceil_f32 v{MREG}, v{MREG}
    v_add_f32 v{MREG}, {hx(f2u(float(MARGIN)))}, v{MREG}""")
    pack_m(a, MREG)
    a(qk1(SA)); a(qk2(SA))
    a(rdK1(1)); a(rdV1(7).replace(f"offset:{off(7)+1920}", f"offset:{off(7)+1920}") if False else "")
    a(rdK2(1)); a(rdV0(0))
    a(f"""    s_mov_b32 s44, 0
    s_mov_b32 s45, 8
    s_mov_b32 s46, 0
    s_mov_b32 s47, {hx(f2u(2.0**TRIG))}
    s_waitcnt lgkmcnt(0)
    s_nop 7
.p2align 4
K2_AL:""")
    for t in range(8):
        cur, nxt = (SA, SB) if t % 2 == 0 else (SB, SA)
        ex = lambda i: a(f"    v_exp_f32 v{cur+i}, v{cur+i}")
        cv = lambda i: a(f"    v_cvt_pk_bf16_f32 v{P+i}, v{cur+2*i}, v{cur+2*i+1}")
        if t == 6:
            a(f"""    s_add_u32 s44, s44, 1
    s_cmp_eq_u32 s44, 3
    s_cselect_b32 s48, {hx(-2*SLOT)}, {SLOT}
    s_cselect_b32 s44, 0, s44
    v_add_u32 v{AK1}, s48, v{AK1}
    v_add_u32 v{AK2}, s48, v{AK2}
    v_add_u32 v{AK2+1}, s48, v{AK2+1}
{stamp_dyn(2, 87, (118,119,1))}
    s_cmp_eq_u32 s45, 1
    s_cbranch_scc1 K2_NOBAR
    s_barrier
K2_NOBAR:""")
        if t == 7:
            a(f"    v_add_u32 v{AV0}, s48, v{AV0}")
            a(f"    v_add_u32 v{AV0+1}, s48, v{AV0+1}")
        a("    s_waitcnt lgkmcnt(2)")
        a(qk1(nxt)); a(rdK1((t+2) % 8))
        if t in APRIO: a(f"    s_setprio {APRIO[t]}")
        for i in range(5): ex(i)
        if t in (1, 5) and os.environ.get('NORC') == '1':
            a(f"K2_RCB{t}:")
        elif t in (1, 5):
            a(f"""    v_cmp_lt_f32 vcc, s47, abs(v{O+8})
    s_cbranch_vccnz K2_RC{t}
K2_RCB{t}:""")
        a(pv2); a(rdV1(t))
        for i in range(5, 8): ex(i)
        for i in range(4): cv(i)
        a("    s_waitcnt lgkmcnt(2)")
        a(qk2(nxt)); a(rdK2((t+2) % 8))
        for i in range(8, 13): ex(i)
        if t in (2, 6):
            a(f"""    s_cmp_lg_u32 s46, 0
    s_cbranch_scc1 K2_RS{t}
K2_RSB{t}:""")
        a(pv1); a(rdV0((t+1) % 8))
        for i in range(13, 16): ex(i)
        for i in range(4, 8): cv(i)
        if t == 7:
            a(f"    v_add_u32 v{AV1}, s48, v{AV1}")
            a(f"    v_add_u32 v{AV1+1}, s48, v{AV1+1}")
    a(f"""    s_sub_u32 s45, s45, 1
    s_cmp_lg_u32 s45, 0
    s_cbranch_scc1 K2_AL
    s_waitcnt lgkmcnt(0)""")
    a(pv2)
    a(stamp(2, 3, vt=(118,119,1)))
    a(f"""K2_ATT_FIN:
    s_nop 15
    v_mov_b32 v{T0}, v{O+8}
    v_mov_b32 v{T0+1}, v{O+8}
    v_permlane32_swap_b32 v{T0}, v{T0+1}
    s_cmp_lg_u32 s45, 0
    s_cbranch_scc1 K2_ATT_OK
    v_mov_b32 v{T0+2}, v{T0+1}""")
    for r in range(0, 12, 2):
        a(f"    v_max3_f32 v{T0+2}, v{T0+2}, abs(v{O+r}), abs(v{O+r+1})")
    a(f"""    v_add_f32 v{T0+3}, v{O}, v{O+1}""")
    for r in range(2, 12):
        a(f"    v_add_f32 v{T0+3}, v{T0+3}, v{O+r}")
    a(f"""    s_mov_b32 s50, {hx(f2u(2.0**120))}
    s_mov_b32 s51, {hx(f2u(2.0**-100))}
    v_cmp_ngt_f32 vcc, s50, v{T0+2}
    s_cbranch_vccnz K2_SLOW
    v_cmp_u_f32 vcc, v{T0+3}, v{T0+3}
    s_cbranch_vccnz K2_SLOW
    v_cmp_nlt_f32 vcc, s51, v{T0+1}
    s_cbranch_vccnz K2_SLOW""")
    if FORCE_SLOW: a("    s_branch K2_SLOW")
    a(f"""K2_ATT_OK:
    v_rcp_f32 v{T0+1}, v{T0+1}
    s_lshl_b32 s50, s40, 1
    s_mul_i32 s50, s50, {44*1024}
    s_add_u32 s50, s50, {hx(WS_OU)}
    s_lshr_b32 s51, s36, 1
    s_lshl_b32 s51, s51, 10
    s_and_b32 s52, s36, 1
    s_lshl_b32 s53, s52, 9
    s_add_u32 s51, s51, s53
    s_add_u32 s51, s51, s50
    s_lshr_b32 s53, s36, 3
    s_add_u32 s53, s53, 16
    s_lshl_b32 s53, s53, 10
    s_bfe_u32 s54, s36, 0x20001
    s_lshl_b32 s54, s54, 8
    s_add_u32 s53, s53, s54
    s_lshl_b32 s54, s52, 3
    s_add_u32 s53, s53, s54
    s_add_u32 s53, s53, s50
    v_bfe_u32 v5, v2, 4, 1
    v_mul_u32_u24 v5, {44*1024}, v5
    v_and_b32 v6, 15, v2
    v_lshl_add_u32 v5, v6, 4, v5
    v_lshrrev_b32 v6, 5, v2
    v_lshl_add_u32 v6, v6, 8, v5""")
    for r in range(12): a(f"    v_mul_f32 v{O+r}, v{O+r}, v{T0+1}")
    for r in range(6): a(f"    v_cvt_pk_bf16_f32 v{O+r}, v{O+2*r}, v{O+2*r+1}")
    a(f"""    buffer_store_dwordx4 {vr(O,4)}, v6, s[16:19], s51 offen
    s_mov_b32 exec_hi, 0
    buffer_store_dwordx2 {vr(O+4,2)}, v5, s[16:19], s53 offen""")
    if DIAG:
        a("    s_mov_b32 exec_hi, -1\n    s_waitcnt vmcnt(0)")
        a(stamp(2, 4, vt=(118,119,1)))
    a("    s_endpgm")
    for t in (1, 5):
        a(f"""K2_RC{t}:
    v_mov_b32 v{T0+4}, v{O+8}
    v_mov_b32 v{T0+5}, v{O+8}
    v_permlane32_swap_b32 v{T0+4}, v{T0+5}    ; T0+5 = l
    v_frexp_exp_i32_f32 v{T0+4}, v{T0+5}
    v_add_u32 v{T0+4}, {MARGIN}, v{T0+4}
    v_max_i32 v{T0+4}, 0, v{T0+4}
    v_cvt_f32_i32 v{T0+4}, v{T0+4}
    v_mov_b32 v{T0+6}, v{MREG}
    v_add_f32 v{MREG}, v{MREG}, v{T0+4}""")
        pack_m(a, MREG)
        a(f"""    v_sub_f32 v{T0+6}, v{T0+6}, v{MREG}
    v_cvt_i32_f32 v{EREG}, v{T0+6}
    s_mov_b32 s46, 1
    s_branch K2_RCB{t}""")
    for t in (2, 6):
        a(f"K2_RS{t}:")
        for r in range(12): a(f"    v_ldexp_f32 v{O+r}, v{O+r}, v{EREG}")
        a(f"""    s_mov_b32 s46, 0
    s_branch K2_RSB{t}""")
    a(f"""K2_SLOW:
    v_cndmask_b32 v{Q2}, v{Q2}, 0, s[60:61]
    v_lshlrev_b32 v{AK1}, 4, v2
    v_and_b32 v3, 31, v2
    v_lshlrev_b32 v{AK2}, 3, v3
    v_lshrrev_b32 v4, 5, v2
    v_min_u32 v5, 19, v3
    v_mad_u32_u24 v5, v4, 20, v5
    v_lshlrev_b32 v{AV0}, 4, v5
    v_mov_b32 v5, 0x3f803f80
    v_cndmask_b32 v{AV1}, 0, v5, s[64:65]
    v_mov_b32 v{MREG}, 0xff800000
    s_mul_i32 s50, s36, {64*2560}
    s_add_u32 s50, s50, {hx(WS_KV)}
    s_mov_b32 s45, 64""")
    for r in range(16): a(f"    v_mov_b32 v{O+r}, 0")
    a(f"""K2_SL:
    buffer_load_dwordx4 {vr(K1F,4)}, v{AK1}, s[16:19], s50 offen
    buffer_load_dwordx2 {vr(K2F,2)}, v{AK2}, s[16:19], s50 offen offset:1024
    buffer_load_dwordx4 {vr(V0F,4)}, v{AV0}, s[16:19], s50 offen offset:1280
    buffer_load_dwordx4 {vr(V1F,4)}, v{AV0}, s[16:19], s50 offen offset:1920
    s_waitcnt vmcnt(0)""")
    a(qk1(SA)); a(qk2(SA))
    for r in range(8): a(f"    v_cndmask_b32 v{V0F+r}, v{AV1}, v{V0F+r}, s[62:63]")
    max16(a, T0, SA, True)
    a(f"""    v_mov_b32 v{T0+1}, v{T0}
    v_permlane32_swap_b32 v{T0}, v{T0+1}
    v_max3_f32 v{T0}, v{T0}, v{T0+1}, v{MREG}   ; m_new
    v_sub_f32 v{T0+1}, v{MREG}, v{T0}
    v_exp_f32 v{T0+1}, v{T0+1}
    v_mov_b32 v{MREG}, v{T0}""")
    for r in range(16): a(f"    v_sub_f32 v{SA+r}, v{SA+r}, v{T0}")
    for r in range(16): a(f"    v_exp_f32 v{SA+r}, v{SA+r}")
    for r in range(12): a(f"    v_mul_f32 v{O+r}, v{O+r}, v{T0+1}")
    for r in range(8): a(f"    v_cvt_pk_bf16_f32 v{P+r}, v{SA+2*r}, v{SA+2*r+1}")
    a(pv1); a(pv2)
    a(f"""    s_add_u32 s50, s50, 2560
    s_sub_u32 s45, s45, 1
    s_cmp_lg_u32 s45, 0
    s_cbranch_scc1 K2_SL
    s_mov_b32 s45, 1
    s_branch K2_ATT_FIN""")

class VmQ:
    def __init__(self, a): self.a = a; self.q = []
    def op(self, tag, text):
        self.a(text); self.q.append(tag)
    def wait(self, pred):
        idx = [i for i, t in enumerate(self.q) if pred(t)]
        if not idx: return
        n = len(self.q) - 1 - idx[-1]
        assert n <= 63
        self.a(f"    s_waitcnt vmcnt({n})")
        self.q = self.q[idx[-1]+1:]

GCNT = K2_LDS
K2_LDS_TOTAL = K2_LDS + 512
SCHED = [int(x) for x in os.environ.get('SCHED', '0,2,6,6,6,6,6,0').split(',')]
assert sum(SCHED) == 32 and len(SCHED) == 8

def gsync(a, n, tag):
    a(f"""    s_mov_b64 exec, 1
    ds_add_u32 v13, v14
K2_GS{tag}:
    s_sleep 1
    ds_read_b32 v15, v13
    s_waitcnt lgkmcnt(0)
    v_readfirstlane_b32 s50, v15
    s_cmp_lt_u32 s50, {4*n}
    s_cbranch_scc1 K2_GS{tag}
    s_mov_b64 exec, -1""")

def gemm(a):
    ACC = 16
    ZF = 112
    WF = 160
    Q = VmQ(a)
    a(f"""K2_GEMM:
    s_setprio {os.environ.get('GPRIO0', '3')}
    s_sub_u32 s40, s33, 8                   ; gw
    v_lshlrev_b32 v3, 4, v2                 ; lane*16
    s_mul_i32 s41, s36, {64*2560}
    s_mul_i32 s42, s40, 5120
    s_add_u32 s41, s41, s42
    s_add_u32 s41, s41, {hx(WS_KV)}
    s_mul_i32 s42, s40, {PAIR}
    s_add_u32 s42, s42, {KVO}""")
    def kv_issue(p):
        a(f"    s_add_u32 m0, s42, {(p%3)*SLOT}")
        a(f"    s_add_u32 s50, s41, 4096")
        for m in range(4):
            Q.op(('kv', p), f"    buffer_load_dwordx4 v3, s[16:19], s41 offen offset:{m*1024} lds")
        a(f"    s_add_u32 m0, s42, {(p%3)*SLOT+4096}")
        a(f"    s_add_u32 s41, s41, 20480")
        Q.op(('kv', p), f"    buffer_load_dwordx4 v3, s[16:19], s50 offen lds")
    kv_issue(0)
    YV = ACC + 80
    YD = ZF
    a(f"""    v_and_b32 v6, 31, v2
    v_lshrrev_b32 v7, 5, v2
    s_lshr_b32 s52, s2, 1
    s_mul_i32 s52, s52, 3072
    s_and_b32 s53, s2, 1
    s_lshl_b32 s53, s53, 9
    s_add_u32 s52, s52, s53
    s_add_u32 s53, s52, {hx(WS_Y2)}
    s_add_u32 s54, s52, {hx(WS_Z2)}
    s_lshl_b32 s55, s40, 1""")
    for m in range(3):
        a(f"""    v_add3_u32 v8, v7, s55, {8*m}
    v_mul_u32_u24 v9, 43, v8
    v_lshrrev_b32 v9, 7, v9                 ; fg
    v_mul_u32_u24 v9, {128*3-3}, v9
    v_add_u32 v9, v9, v8
    v_lshlrev_b32 v9, 10, v9
    v_lshl_add_u32 v{YV+m}, v6, 4, v9""")
        Q.op('y', f"    buffer_load_dwordx4 {vr(YD+4*m,4)}, v{YV+m}, s[16:19], s53 offen")
    a(f"""    v_lshrrev_b32 v8, 3, v2
    v_lshlrev_b32 v8, 12, v8
    v_lshrrev_b32 v9, 4, v2
    v_and_b32 v10, 7, v2
    v_xor_b32 v9, v9, v10
    v_lshl_add_u32 v4, v9, 4, v8
    v_xor_b32 v5, 64, v4
    s_lshl_b32 s44, s36, 18                 ; tb*64*4096
    s_lshl_b32 s45, s40, 7
    s_add_u32 s44, s44, s45
    s_lshl_b32 s45, s40, 14
    s_mul_i32 s47, s37, {128*3072}
    s_mul_i32 s48, s40, {4*3072}
    s_add_u32 s47, s47, s48
    s_add_u32 s47, s47, {hx(WS_Z2)}         ; z2 soffset""")
    def w_issue(b):
        for m in range(8):
            a(f"    s_add_u32 m0, s45, {(b&1)*8192 + m*1024}")
            a(f"    s_add_u32 s50, s44, {m*8*4096}")
            Q.op(('w', b), f"    buffer_load_dwordx4 v{4+(m&1)}, s[8:11], s50 offen lds")
        a("    s_add_u32 s44, s44, 512")
    def z_issue(st):
        js = st & 3
        for ft in range(3):
            Q.op(('z', st), f"    buffer_load_dwordx4 {vr(ZF+js*12+ft*4,4)}, v3, s[16:19], s47 offen offset:{ft*1024} sc1")
        a(f"    s_add_u32 s47, s47, {3072 if js < 3 else 3072 + 12*3072}")
    w_issue(0)
    a(f"""    v_bfe_u32 v12, v2, 1, 3
    v_xor_b32 v12, v12, v7
    v_lshlrev_b32 v12, 4, v12
    v_lshl_add_u32 v12, v6, 7, v12
    v_add_u32 v12, s45, v12""")
    for js in range(4): a(f"    v_xor_b32 v{8+js}, {js*32}, v12")
    a(f"""    v_mov_b32 v13, {GCNT}
    v_mov_b32 v14, 0
    ds_write_b32 v13, v14
    v_mov_b32 v14, 1
    s_waitcnt lgkmcnt(0)""")
    Q.wait(lambda t: t == ('kv', 0))
    a("    s_barrier                               ; b0")
    kv_issue(1)
    w_issue(1)
    Q.wait(lambda t: t == 'y')
    X = ACC
    SM, SQ = ACC+24, ACC+32
    for m in range(3):
        for e in range(4):
            a(f"    v_lshlrev_b32 v{X+8*m+2*e}, 16, v{YD+4*m+e}")
            a(f"    v_and_b32 v{X+8*m+2*e+1}, 0xffff0000, v{YD+4*m+e}")
    for e in range(8):
        a(f"    v_add_f32 v{SM+e}, v{X+e}, v{X+8+e}")
        a(f"    v_mul_f32 v{SQ+e}, v{X+e}, v{X+e}")
    for e in range(8):
        a(f"    v_add_f32 v{SM+e}, v{SM+e}, v{X+16+e}")
        a(f"    v_fmac_f32 v{SQ+e}, v{X+8+e}, v{X+8+e}")
    for e in range(8):
        a(f"    v_fmac_f32 v{SQ+e}, v{X+16+e}, v{X+16+e}")
    for e in range(8): a(f"    v_permlane32_swap_b32 v{SM+e}, v{SQ+e}")
    for e in range(8): a(f"    v_add_f32 v{SM+e}, v{SM+e}, v{SQ+e}")
    for e in range(4): a(f"    v_permlane16_swap_b32 v{SM+e}, v{SM+4+e}")
    for e in range(4): a(f"    v_add_f32 v{SM+e}, v{SM+e}, v{SM+4+e}")
    for pat in ("quad_perm:[1,0,3,2]", "quad_perm:[2,3,0,1]", "row_half_mirror", "row_mirror"):
        for e in range(4):
            a(f"    v_add_f32_dpp v{SM+e}, v{SM+e}, v{SM+e} {pat} row_mask:0xf bank_mask:0xf")
    T = ACC + 40
    a(f"""    v_and_b32 v{T}, 48, v2
    s_lshl_b32 s50, s40, 6
    s_add_u32 s50, s50, {GCNT+256}
    v_add_u32 v{T}, s50, v{T}
    ds_write_b128 v{T}, {vr(SM,4)}
    s_waitcnt lgkmcnt(0)""")
    gsync(a, 1, 'A')
    a(f"""    v_lshlrev_b32 v{T}, 2, v2
    v_add_u32 v{T}, {GCNT+256}, v{T}
    ds_read_b32 v{SM}, v{T}
    s_waitcnt lgkmcnt(0)
    v_mov_b32 v{SM+1}, v{SM}
    v_permlane32_swap_b32 v{SM}, v{SM+1}
    v_add_f32 v{SM}, v{SM}, v{SM+1}
    v_mov_b32 v{SM+1}, v{SM}
    v_permlane16_swap_b32 v{SM}, v{SM+1}
    v_add_f32 v{SM}, v{SM}, v{SM+1}
    v_mov_b32_dpp v{SM+1}, v{SM} row_ror:8 row_mask:0xf bank_mask:0xf
    v_mul_f32 v{SM}, {hx(f2u(-1.0/768))}, v{SM}
    v_mul_f32 v{SM+1}, {hx(f2u(1.0/768))}, v{SM+1}
    v_fma_f32 v{SM+1}, -v{SM}, v{SM}, v{SM+1}
    v_max_f32 v{SM+1}, 0, v{SM+1}
    v_add_f32 v{SM+1}, {hx(f2u(1e-5))}, v{SM+1}
    v_rsq_f32 v{SM+1}, v{SM+1}
    s_nop 0
    v_mul_f32 v{SM}, v{SM}, v{SM+1}           ; -mu*r
    s_nop 0""")
    for e in range(8):
        a(f"    v_readlane_b32 s{64+e}, v{SM}, {e}")
        a(f"    v_readlane_b32 s{72+e}, v{SM+1}, {e}")
    for e in range(8): a(f"    v_mov_b32 v{SQ+e}, s{64+e}")
    for m in range(3):
        for e in range(8):
            a(f"    v_fma_f32 v{X+8*m+e}, v{X+8*m+e}, s{72+e}, v{SQ+e}")
        for e in range(4):
            a(f"    v_cvt_pk_bf16_f32 v{YD+4*m+e}, v{X+8*m+2*e}, v{X+8*m+2*e+1}")
        Q.op('zs', f"    buffer_store_dwordx4 {vr(YD+4*m,4)}, v{YV+m}, s[16:19], s54 offen sc1")
    Q.wait(lambda t: t == 'zs')
    a(f"""    s_mov_b64 exec, 1
    ds_add_rtn_u32 v15, v13, v14
    s_waitcnt lgkmcnt(0)
    v_readfirstlane_b32 s50, v15
    s_cmp_lt_u32 s50, 7
    s_cbranch_scc1 K2_NOFLAG
    s_and_b32 s50, s2, 31
    s_lshl_b32 s50, s50, 3
    v_mov_b32 v15, 0
    buffer_atomic_add v14, v15, s[20:23], s50 offen sc1
K2_NOFLAG:
    s_mov_b64 exec, -1
{stamp(2, 7, vt=(164,165,1))}""")
    for r in range(96): a(f"    v_mov_b32 v{ACC+r}, 0")
    a(f"    s_setprio {os.environ.get('GPRIO', '0')}")
    step = 0
    started = False; done = False
    for p in range(8):
        if p > 0:
            if p < 7: kv_issue(p+1)
        if step == 32 and not done:
            gemm_epilogue(a, Q, ACC, ZF); done = True
        if not started and (SCHED[p] > 0 or (p < 7 and SCHED[p+1] > 0 and p >= 1)) and p >= 1:
            a(f"""    v_lshlrev_b32 v12, 3, v6
    s_mov_b32 s51, 0
K2_POLL:
    buffer_load_dword v15, v12, s[20:23], 0 offen sc1
    s_waitcnt vmcnt(0)
    v_cmp_ne_u32 vcc, 8, v15
    s_cbranch_vccz K2_POLL_DONE
    s_sleep 4
    s_add_u32 s51, s51, 1
    s_cmp_lt_u32 s51, 200000
    s_cbranch_scc1 K2_POLL
K2_POLL_DONE:
{stamp(2, 5, vt=(164,165,1))}""")
            Q.q = []
            for st in range(4): z_issue(st)
            started = True
        for _ in range(SCHED[p]):
            b, js = step >> 2, step & 3
            Q.wait(lambda t: t == ('z', step) or t == ('w', b))
            a(f"    ds_read_b128 {vr(WF,4)}, v{8+js} offset:{(b&1)*8192}")
            a(f"    ds_read_b128 {vr(WF+4,4)}, v{8+js} offset:{(b&1)*8192+4096}")
            for tt in range(2):
                a(f"    s_waitcnt lgkmcnt({1-tt})")
                for ft in range(3):
                    c = vr(ACC+(tt*3+ft)*16, 16)
                    a(f"    v_mfma_f32_32x32x16_bf16 {c}, {vr(ZF+js*12+ft*4,4)}, {vr(WF+4*tt,4)}, {c}")
            if step + 4 < 32: z_issue(step+4)
            if js == 3 and b + 2 < 8: w_issue(b+2)
            step += 1
            if step == 32 and p == 7: gemm_epilogue(a, Q, ACC, ZF)
        if p < 7: Q.wait(lambda t: t == ('kv', p+1))
        a(stamp_dyn(2, 87, (164,165,1)))
        if p < 7: a(f"    s_barrier                               ; b{p+1}")
    if DIAG: a("    s_waitcnt vmcnt(0)")
    a(stamp(2, 6, vt=(164,165,1)))
    a("    s_endpgm")

def gemm_epilogue(a, Q, ACC, ZF):
    Z1R = ZF; BR = ZF + 12
    a(f"    s_setprio {os.environ.get('GPRIOE', '3')}")
    for e in range(3):
        a(f"""    s_mul_i32 s52, s40, 3
    s_add_u32 s52, s52, {e}                 ; ht
    s_lshr_b32 s53, s52, 1                  ; tile
    s_and_b32 s54, s52, 1                   ; p
    s_cmp_ge_u32 s53, 3
    s_cselect_b32 s55, 1, 0                 ; tt
    s_cselect_b32 s56, 3, 0
    s_sub_u32 s56, s53, s56                 ; ft
    s_lshl_b32 s57, s36, 1
    s_add_u32 s57, s57, s55                 ; stile
    s_mul_i32 s58, s37, 3
    s_add_u32 s58, s58, s56                 ; ntile
    s_mul_i32 s59, s57, 24
    s_add_u32 s59, s59, s58
    s_lshl_b32 s59, s59, 1
    s_add_u32 s59, s59, s54
    s_lshl_b32 s59, s59, 10
    s_add_u32 s59, s59, {hx(WS_Z1)}""")
        Q.op('e', f"    buffer_load_dwordx4 {vr(Z1R+4*e,4)}, v3, s[16:19], s59 offen")
        a(f"""    s_lshl_b32 s59, s57, 6
    v_lshlrev_b32 v5, 1, v6""")
        Q.op('e', f"    buffer_load_ushort v{BR+e}, v5, s[12:15], s59 offen")
        a(f"""    s_mul_i32 s59, s57, {2*44}
    s_add_u32 s59, s59, s58
    s_add_u32 s59, s59, 20
    s_lshl_b32 s59, s59, 10
    s_lshl_b32 s54, s54, 9
    s_add_u32 s59, s59, s54
    s_add_u32 s{64+e}, s59, {hx(WS_OU)}""")
    gsync(a, 3, 'B')
    a(f"""    s_mul_i32 s50, s40, 24576
    v_add_u32 v4, s50, v3""")
    for r in range(24):
        a(f"    ds_write_b128 v4, {vr(ACC+4*r,4)} offset:{r*1024}")
    a(f"""    s_mul_i32 s50, s40, {3*2048}
    v_add_u32 v4, s50, v3
    v_add_u32 v5, {2*24576}, v4
    v_bfe_u32 v8, v2, 4, 1
    v_mul_u32_u24 v8, {44*1024}, v8
    v_and_b32 v9, 15, v2
    v_lshl_add_u32 v8, v9, 4, v8
    v_lshl_add_u32 v8, v7, 8, v8
    s_waitcnt lgkmcnt(0)""")
    gsync(a, 4, 'C')
    Q.wait(lambda t: t == 'e')
    for e in range(3):
        r0 = ACC + e*32
        for w in range(4):
            for q in range(2):
                a(f"    ds_read_b128 {vr(r0+w*8+q*4,4)}, v{4+(w>>1)} offset:{(w&1)*24576 + e*2048 + q*1024}")
        a(f"    v_lshlrev_b32 v{BR+e}, 16, v{BR+e}")
        a("    s_waitcnt lgkmcnt(0)")
        for i in range(8):
            a(f"    v_add_f32 v{r0+i}, v{r0+i}, v{r0+8+i}")
            a(f"    v_add_f32 v{r0+16+i}, v{r0+16+i}, v{r0+24+i}")
        for i in range(8):
            a(f"    v_add_f32 v{r0+i}, v{r0+i}, v{r0+16+i}")
        for i in range(4):
            a(f"    v_lshlrev_b32 v{r0+8+2*i}, 16, v{Z1R+4*e+i}")
            a(f"    v_and_b32 v{r0+9+2*i}, 0xffff0000, v{Z1R+4*e+i}")
        for i in range(8):
            a(f"    v_add_f32 v{r0+i}, v{r0+i}, v{BR+e}")
        for i in range(8):
            a(f"    v_mul_f32 v{r0+i}, v{r0+i}, v{r0+8+i}")
        for i in range(4):
            a(f"    v_cvt_pk_bf16_f32 v{r0+i}, v{r0+2*i}, v{r0+2*i+1}")
        Q.op('u', f"    buffer_store_dwordx4 {vr(r0,4)}, v8, s[16:19], s{64+e} offen")

def gen_k2(a):
    a(f""".p2align 8
.type k2_kernel,@function
k2_kernel:
    s_cmp_ge_u32 s2, 256
    s_cbranch_scc1 K2_END
    s_load_dwordx4 s[4:7], s[0:1], 40
    s_load_dwordx4 s[24:27], s[0:1], 72
    v_lshrrev_b32 v1, 6, v0
    v_and_b32 v2, 63, v0
    v_readfirstlane_b32 s33, v1
    s_and_b32 s34, s2, 7
    s_lshr_b32 s35, s2, 3
    s_lshl_b32 s36, s34, 2
    s_and_b32 s37, s35, 3
    s_add_u32 s36, s36, s37
    s_lshr_b32 s37, s35, 2
    s_mov_b32 s87, 0
    s_waitcnt lgkmcnt(0)
{srd(16, 26, WS_END)}
{srd(20, 24, 256)}
{srd(8, 4, 2048*4096)}
{srd(12, 6, 4096)}
{stamp(2, 0, vt=(14,15,1))}
    s_cmp_ge_u32 s33, 8
    s_cbranch_scc1 K2_GEMM""")
    attention(a)
    gemm(a)
    a("K2_END:\n    s_endpgm")

KERNELS = [dict(name='k2_kernel', gen=gen_k2, grid=256, block=768, lds=K2_LDS_TOTAL, vgpr=168)]
```

```python
from asmlib import Asm
from gen_common import *

RSTR = 336
PSZ = 64*RSTR
K3_LDS = 4*PSZ

def gen_k3(a):
    NK = 11
    DEPTH = 4
    ACC = 0 + 16
    FR = 96
    a(f""".p2align 8
.type k3_kernel,@function
k3_kernel:
    s_cmp_ge_u32 s2, 256
    s_cbranch_scc1 K3_END
    s_load_dwordx2 s[4:5], s[0:1], 0        ; x
    s_load_dwordx2 s[6:7], s[0:1], 64       ; out
    s_load_dwordx2 s[24:25], s[0:1], 80     ; ws
    v_lshrrev_b32 v1, 6, v0
    v_and_b32 v2, 63, v0
    v_readfirstlane_b32 s33, v1
    v_lshlrev_b32 v3, 4, v2
    s_and_b32 s34, s2, 7
    s_lshr_b32 s35, s2, 3
    s_lshl_b32 s36, s34, 2
    s_and_b32 s37, s35, 3
    s_add_u32 s36, s36, s37                 ; tb
    s_lshr_b32 s37, s35, 2                  ; ng
    s_mul_i32 s40, s36, {4*44*1024}
    s_lshl_b32 s41, s33, 10
    s_add_u32 s40, s40, s41
    s_add_u32 s40, s40, {hx(WS_OU)}
    s_add_u32 s41, s40, {44*1024}
    s_add_u32 s42, s40, {2*44*1024}
    s_add_u32 s43, s40, {3*44*1024}
    s_mul_i32 s44, s37, {44*5*1024}
    s_mul_i32 s45, s33, {5*1024}
    s_add_u32 s44, s44, s45
    s_add_u32 s44, s44, {hx(WS_WT)}         ; A base
    s_add_u32 s45, s44, 4096
    s_waitcnt lgkmcnt(0)
{srd(16, 24, WS_END)}
{srd(8, 4, 2048*1280)}
{srd(12, 6, 2048*1280)}
{stamp(3, 0, vt=(14,15,1))}""")
    def loads(i):
        b = FR + (i % DEPTH)*36
        for nt in range(5):
            so, off = (44, nt*1024) if nt < 4 else (45, 0)
            a(f"    buffer_load_dwordx4 {vr(b+4*nt,4)}, v3, s[16:19], s{so} offen offset:{off}")
            if nt < 4:
                a(f"    buffer_load_dwordx4 {vr(b+20+4*nt,4)}, v3, s[16:19], s{40+nt} offen")
        if i < NK-1:
            for r in (40, 41, 42, 43): a(f"    s_add_u32 s{r}, s{r}, 4096")
            for r in (44, 45): a(f"    s_add_u32 s{r}, s{r}, {4*5*1024}")
    for i in range(DEPTH): loads(i)
    a(f"""    s_mul_i32 s46, s36, {64*1280}
    s_mul_i32 s47, s37, 160
    s_add_u32 s46, s46, s47""")
    XR = FR + DEPTH*36
    for m in range(5):
        a(f"""    v_add_u32 v14, {256*m}, v0
    v_mul_u32_u24 v15, 3277, v14
    v_lshrrev_b32 v15, 16, v15              ; t
    v_mul_u32_u24 v{4+m}, 20, v15
    v_sub_u32 v14, v14, v{4+m}              ; nq
    v_mul_u32_u24 v{4+m}, 1280, v15
    v_lshl_add_u32 v{4+m}, v14, 3, v{4+m}
    v_mul_u32_u24 v{9+m}, {RSTR}, v15
    v_lshl_add_u32 v{9+m}, v14, 4, v{9+m}""")
    issued = DEPTH
    for i in range(NK):
        out_after = (issued - 1 - i)*9 + (5 if issued == NK and i > NK-1-DEPTH else 0)
        a(f"    s_waitcnt vmcnt({out_after})")
        if i == 0: a(stamp(3, 1, vt=(14,15,1)).replace("lgkmcnt(0)", "lgkmcnt(0)") if False else "")
        b = FR + (i % DEPTH)*36
        for nt in range(5):
            for tt in range(4):
                c = vr(ACC + (nt*4+tt)*4, 4)
                a(f"    v_mfma_f32_16x16x32_bf16 {c}, {vr(b+4*nt,4)}, {vr(b+20+4*tt,4)}, {c if i else 0}")
        if issued < NK:
            loads(issued); issued += 1
            if issued == NK:
                for m in range(5):
                    a(f"    buffer_load_dwordx2 {vr(XR+2*m,2)}, v{4+m}, s[8:11], s46 offen")
    a(stamp(3, 2, vt=(14,15,1)))
    a(f"""    v_and_b32 v14, 15, v2
    v_mul_u32_u24 v14, {RSTR}, v14
    v_lshrrev_b32 v15, 4, v2
    v_lshl_add_u32 v14, v15, 4, v14
    s_mul_i32 s47, s33, {PSZ}
    v_add_u32 v14, s47, v14""")
    for nt in range(5):
        for tt in range(4):
            a(f"    ds_write_b128 v14, {vr(ACC+(nt*4+tt)*4,4)} offset:{tt*16*RSTR + nt*64}")
    a("    s_waitcnt lgkmcnt(0)\n    s_barrier")
    R = FR
    for m in range(5):
        for w in range(4):
            if w*PSZ < 65536:
                a(f"    ds_read_b128 {vr(R+m*16+4*w,4)}, v{9+m} offset:{w*PSZ}")
    a("    s_waitcnt vmcnt(0)")
    for m in range(5):
        a(f"    s_waitcnt lgkmcnt({min(15, 4*(4-m))})")
        r = R + m*16
        for e in range(4):
            a(f"    v_add_f32 v{r+e}, v{r+e}, v{r+4+e}")
            a(f"    v_add_f32 v{r+8+e}, v{r+8+e}, v{r+12+e}")
        a(f"""    v_lshlrev_b32 v{r+4}, 16, v{XR+2*m}
    v_and_b32 v{r+5}, 0xffff0000, v{XR+2*m}
    v_lshlrev_b32 v{r+6}, 16, v{XR+2*m+1}
    v_and_b32 v{r+7}, 0xffff0000, v{XR+2*m+1}""")
        for e in range(4):
            a(f"    v_add_f32 v{r+e}, v{r+e}, v{r+8+e}")
        for e in range(4):
            a(f"    v_add_f32 v{r+e}, v{r+e}, v{r+4+e}")
        a(f"""    v_cvt_pk_bf16_f32 v{r}, v{r}, v{r+1}
    v_cvt_pk_bf16_f32 v{r+1}, v{r+2}, v{r+3}
    buffer_store_dwordx2 {vr(r,2)}, v{4+m}, s[12:15], s46 offen""")
    if DIAG: a("    s_waitcnt vmcnt(0)")
    a(stamp(3, 3, vt=(14,15,1)))
    if DIAG:
        DW = int(os.environ.get('DBGWG', '0'))
        ent = [(0,0,0),(0,0,2),(0,0,3),(0,0,4),(0,0,5),(2,0,0),(2,0,2),(2,8,7),(2,8,5),(2,7,3),(2,7,4),(2,8,6),(3,0,0),(3,0,2),(3,0,3),(0,4,0)]
        a(f"    s_cmp_lg_u32 s2, {DW}\n    s_cbranch_scc1 K3_END\n    s_cmp_lg_u32 s33, 0\n    s_cbranch_scc1 K3_END\n    s_load_dwordx2 s[60:61], s[0:1], 72\n    v_mov_b32 v20, 0\n    s_waitcnt vmcnt(0) lgkmcnt(0)")
        a(srd(64, 60, 64))
        for i, (k, w, sl) in enumerate(ent):
            a(f"    s_mov_b32 s70, {hx(WS_DIAG + k*256*16*128 + (DW*16 + w)*128 + sl*8)}")
            a(f"    v_writelane_b32 v20, s70, {i}")
        a("    buffer_load_dword v21, v20, s[16:19], 0 offen sc1\n    v_lshlrev_b32 v22, 2, v2\n    s_waitcnt vmcnt(0)\n    v_readfirstlane_b32 s70, v21\n    s_nop 1\n    v_subrev_u32 v21, s70, v21\n    buffer_store_dword v21, v22, s[64:67], 0 offen")
    a("K3_END:\n    s_endpgm")

KERNELS = [dict(name='k3_kernel', gen=gen_k3, grid=256, block=256, lds=K3_LDS, vgpr=256)]
```
